```python
import torch

def _softmax(x, axis=-1):
    return torch.softmax(x, dim=axis)
def _gelu(x):
    return torch.nn.functional.gelu(x, approximate="tanh")
def _silu(x):
    return torch.nn.functional.silu(x)
def _sigmoid(x):
    return torch.sigmoid(x)
def _layernorm(x, axis=-1, eps=1e-5):
    m = x.mean(dim=axis, keepdim=True)
    v = x.var(dim=axis, keepdim=True, unbiased=False)
    return (x - m) / torch.sqrt(v + eps)
def _scatter_add(tgt, idx, src, axis=0):
    return tgt.clone().index_add_(axis, idx, src)
def _segment_sum(src, seg, n):
    out = torch.zeros((n,) + src.shape[1:], dtype=src.dtype)
    return out.index_add_(0, seg, src)
def _pad(x, pw):
    flat = tuple(v for pair in reversed(pw) for v in pair)
    return torch.nn.functional.pad(x, flat)

kernel_name = 'parallel_sum__ssm_conv_h3__swiglu_ffn__prompt'

def setup_inputs():

    _w = (lambda a: (lambda t: t.to(torch.bfloat16) if t.is_floating_point() else t)(torch.as_tensor(a)))
    def _A_setup():
        B, S, D = 1, 2048, 640
        ks = 4
        return {
            "q": _w((lambda *s: torch.randn(*s, dtype=torch.bfloat16) * 0.05)(B, S, D)),
            "k": _w((lambda *s: torch.randn(*s, dtype=torch.bfloat16) * 0.8)(B, S, D)),
            "v": _w((lambda *s: torch.randn(*s, dtype=torch.bfloat16) * 0.4)(B, S, D)),
            "shift_k": _w((lambda *s: torch.randn(*s, dtype=torch.bfloat16) * 0.8)(D, ks) * 0.5),
            "ssm_k": _w((lambda *s: torch.randn(*s, dtype=torch.bfloat16) * 0.8)(D, S) * (1.0 / S ** 0.5)),
            "ssm_D": _w((lambda *s: torch.randn(*s, dtype=torch.bfloat16) * 0.4)(D)),
        }
    _A_in = _A_setup()

    def _B_setup():
        B, S, D, F = 1, 2048, 640, 1728
        return {
            "x": _w((lambda *s: torch.randn(*s, dtype=torch.bfloat16) * 0.05)(B, S, D)),
            "w_gate": _w((lambda *s: torch.randn(*s, dtype=torch.bfloat16) * 0.05)(D, F)),
            "w_up": _w((lambda *s: torch.randn(*s, dtype=torch.bfloat16) * 0.05)(D, F)),
            "w_down": _w((lambda *s: torch.randn(*s, dtype=torch.bfloat16) * 0.05)(F, D)),
        }
    _B_in = _B_setup()

    return {
        "A_q": _A_in["q"],
        "A_k": _A_in["k"],
        "A_v": _A_in["v"],
        "A_shift_k": _A_in["shift_k"],
        "A_ssm_k": _A_in["ssm_k"],
        "A_ssm_D": _A_in["ssm_D"],
        "B_x": _B_in["x"],
        "B_w_gate": _B_in["w_gate"],
        "B_w_up": _B_in["w_up"],
        "B_w_down": _B_in["w_down"],
    }

def reference(A_q, A_k, A_v, A_shift_k, A_ssm_k, A_ssm_D, B_x, B_w_gate, B_w_up, B_w_down):
    def _A_ref(q, k, v, shift_k, ssm_k, ssm_D):
        B, S, D = q.shape
        ks = shift_k.shape[-1]
        k_pad = _pad(k, ((0, 0), (ks - 1, 0), (0, 0)))
        k_shift = torch.zeros_like(k)
        for t in range(ks):
            k_shift = k_shift + k_pad[:, t:t + S, :] * shift_k[:, ks - 1 - t][None, None, :]
        kv = k_shift * v
        L = 2 * S
        kv_pad = _pad(kv, ((0, 0), (0, S), (0, 0)))
        kf_pad = _pad(ssm_k, ((0, 0), (0, S)))
        kv_f = (lambda x, axes=(-2,-1): torch.fft.rfft2(x.float(), dim=axes))(kv_pad[:, None, :, :], axes=(1, 2))
        kf_f = (lambda x, axes=(-2,-1): torch.fft.rfft2(x.float(), dim=axes))(kf_pad[:, None, :], axes=(1, 2))
        kf_f = (lambda x, *d: x.permute(*d))(kf_f, 1, 2, 0)
        y_f = kv_f * kf_f[None, :, :, :]
        y = (lambda x, s, axes=(-2,-1): torch.fft.irfft2(x, s=s, dim=axes).to(torch.bfloat16))(y_f, (1, L), axes=(1, 2))[:, 0, :S, :]
        y = y + kv * ssm_D[None, None, :]
        return q * y

    def _B_ref(x, w_gate, w_up, w_down):
        g = _silu(x @ w_gate)
        u = x @ w_up
        return (g * u) @ w_down

    x = A_q
    xn = _layernorm(x, axis=-1)
    return x + _A_ref(xn, A_k, A_v, A_shift_k, A_ssm_k, A_ssm_D) + _B_ref(xn, B_w_gate, B_w_up, B_w_down)
```

```python
import struct

def f2h(x):
    return "0x%08x" % struct.unpack("<I", struct.pack("<f", x))[0]

class Asm:
    def __init__(self):
        self.L = []
    def __call__(self, s, *a):
        if a: s = s % a
        self.L.append("    " + s)
    def label(self, s):
        self.L.append(s + ":")
    def c(self, s):
        self.L.append("    ; " + s)
    def raw(self, s):
        self.L.append(s)
    def text(self):
        return "\n".join(self.L) + "\n"

def R(i):
    return "v%d" % i if i < 256 else "a%d" % (i - 256)

def RR(i, n):
    if n == 1: return R(i)
    if i < 256:
        assert i + n <= 256, (i, n)
        return "v[%d:%d]" % (i, i + n - 1)
    return "a[%d:%d]" % (i - 256, i - 256 + n - 1)

def S(i, n=1):
    return "s%d" % i if n == 1 else "s[%d:%d]" % (i, i + n - 1)

def srd(A, d, lo, nbytes, add=None):
    if add is None:
        A("s_mov_b32 s%d, s%d", d, lo)
        A("s_mov_b32 s%d, s%d", d + 1, lo + 1)
    else:
        A("s_add_u32 s%d, s%d, %s", d, lo, add)
        A("s_addc_u32 s%d, s%d, 0", d + 1, lo + 1)
    A("s_mov_b32 s%d, %s", d + 2, nbytes if isinstance(nbytes, str) else hex(nbytes))
    A("s_mov_b32 s%d, 0x20000", d + 3)

def kd(name, vgpr, accum, sgpr=96):
    return """.amdhsa_kernel %s
  .amdhsa_next_free_vgpr %d
  .amdhsa_next_free_sgpr %d
  .amdhsa_accum_offset %d
  .amdhsa_group_segment_fixed_size 0
  .amdhsa_kernarg_size 104
  .amdhsa_user_sgpr_count 2
  .amdhsa_user_sgpr_kernarg_segment_ptr 1
  .amdhsa_system_sgpr_workgroup_id_x 1
  .amdhsa_float_denorm_mode_32 3
.end_amdhsa_kernel
""" % (name, vgpr, sgpr, accum)
```

```python
from asmlib import *

WS_HF = 0
HF_BYTES = 32*54*4*1024
WS_WD = 0x700000
WD_BYTES = 54*40*1024
WS_UT = 0xA00000
UT_BYTES = 640*4096
WS_YT = 0xD00000
YT_BYTES = 640*4096
WS_ST = 0x1000000
ST_BYTES = 2048*4
X_BYTES = 2048*1280
W_BYTES = 640*3456
NHELP = 40

STAGE = 49152
L_CS = 3*STAGE
L_ST = L_CS + 512
K1_LDS = L_ST + 4096
LOG2E = 1.4426950408889634

def gen_k1(A):
    A.label("k1_kernel")
    A("s_cmp_ge_u32 s2, 256")
    A("s_cbranch_scc1 K1_end")
    A("s_load_dwordx16 s[4:19], s[0:1], 0")
    A("s_load_dwordx8 s[20:27], s[0:1], 64")
    A("s_load_dwordx2 s[28:29], s[0:1], 96")
    A("v_lshrrev_b32 v1, 6, v0")
    A("v_and_b32 v0, 63, v0")
    A("s_and_b32 s31, s2, 7")
    A("v_readfirstlane_b32 s30, v1")
    A("s_lshr_b32 s34, s2, 3")
    A("s_lshr_b32 s35, s31, 2")
    A("s_and_b32 s36, s31, 3")
    A("s_cmp_eq_u32 s36, 3")
    A("s_cselect_b32 s37, 8, 4")
    A("s_cmp_lt_u32 s34, s37")
    A("s_cbranch_scc1 K1_helper")
    A("s_sub_u32 s34, s34, s37")
    A("s_and_b32 s32, s34, 3")
    A("s_lshl_b32 s35, s35, 2")
    A("s_add_u32 s32, s32, s35")
    A("s_lshr_b32 s33, s34, 2")
    A("s_mul_i32 s36, s36, 7")
    A("s_add_u32 s33, s33, s36")
    A("s_mov_b32 s70, %d", STAGE)
    A("s_cmp_ge_u32 s30, 4")
    A("s_cbranch_scc1 K1_loader")
    gen_compute(A)
    gen_loader(A)
    gen_helper(A)
    A.label("K1_end")
    A("s_endpgm")

XA = 8; WA = 12; VST = 14
FR = [16, 40]
ACC = 64
CS = 192
def wfr(b, a): return FR[b] + 4*a
def xfr(b, tt): return FR[b] + 16 + 4*tt
def acc(a, tt): return ACC + (a*2 + tt)*16

def w_addr_setup(A, dst0, dst1, t0, t1):
    A("v_lshrrev_b32 v%d, 5, v0", t0)
    A("v_lshlrev_b32 v%d, 10, v%d", dst0, t0)
    A("v_bfe_u32 v%d, v0, 2, 2", t0)
    A("v_lshl_add_u32 v%d, v%d, 7, v%d", dst0, t0, dst0)
    A("v_lshrrev_b32 v%d, 1, v%d", t0, t0)
    A("v_lshl_add_u32 v%d, v%d, 6, v%d", dst0, t0, dst0)
    A("v_bfe_u32 v%d, v0, 4, 1", t0)
    A("v_lshl_add_u32 v%d, v%d, 5, v%d", dst0, t0, dst0)
    A("v_and_b32 v%d, 3, v0", t0)
    A("v_lshl_add_u32 v%d, v%d, 3, v%d", dst0, t0, dst0)
    A("v_add_u32 v%d, 0x8000, v%d", dst0, dst0)
    A("v_xor_b32 v%d, 64, v%d", dst1, dst0)

def reads_for(s, b):
    out = []
    for a in range(4):
        mat, ft = a >> 1, a & 1
        for e2 in range(2):
            out.append("ds_read_b64_tr_b16 %s, v%d offset:%d" % (RR(wfr(b, a) + 2*e2, 2), WA + ft, mat*8192 + s*2048 + e2*512))
    xs = ["ds_read_b128 %s, v%d offset:%d" % (RR(xfr(b, tt), 4), XA + s, tt*4096) for tt in range(2)]
    return [xs[0], out[0], out[1], xs[1]] + out[2:]

def mfma_list(b):
    out = []
    for a in range(4):
        for tt in range(2):
            d = RR(acc(a, tt), 16)
            out.append("v_mfma_f32_32x32x16_bf16 %s, %s, %s, %s" % (d, RR(wfr(b, a), 4), RR(xfr(b, tt), 4), d))
    return out

def gen_compute(A):
    A.c("---------------- compute waves ----------------")
    A("v_and_b32 v1, 31, v0")
    A("v_lshrrev_b32 v2, 5, v0")
    A("v_bfe_u32 v3, v0, 1, 3")
    A("v_xor_b32 v3, v3, v2")
    A("s_lshl_b32 s31, s30, 13")
    A("v_lshlrev_b32 v4, 7, v1")
    A("v_add_u32 v4, s31, v4")
    A("v_lshl_add_u32 v%d, v3, 4, v4", XA)
    for s in range(1, 4):
        A("v_xor_b32 v%d, %d, v%d", XA + s, 32*s, XA)
    w_addr_setup(A, WA, WA + 1, 5, 6)
    A("v_bfe_u32 v5, v0, 4, 1")
    A("v_lshlrev_b32 v%d, 10, v5", VST)
    A("v_lshl_add_u32 v%d, v2, 8, v%d", VST, VST)
    A("v_and_b32 v5, 15, v0")
    A("v_lshl_add_u32 v%d, v5, 4, v%d", VST, VST)
    A("v_lshlrev_b32 v6, 4, v2")
    A("v_add_u32 v6, %d, v6", L_CS)
    A("s_lshl_b32 s31, s30, 10")
    A("s_add_u32 s31, s31, %d", L_ST)
    A("v_lshlrev_b32 v7, 4, v1")
    A("v_add_u32 v7, s31, v7")
    for r in range(ACC, ACC + 128):
        A("v_mov_b32 v%d, 0", r)
    A("s_waitcnt lgkmcnt(0)")
    srd(A, 40, 28, HF_BYTES)
    A("s_lshl_b32 s31, s32, 2")
    A("s_add_u32 s31, s31, s30")
    A("s_mul_i32 s31, s31, 54")
    A("s_lshl_b32 s34, s33, 1")
    A("s_add_u32 s31, s31, s34")
    A("s_lshl_b32 s38, s31, 12")
    A("s_add_u32 s39, s38, 4096")
    A("s_mov_b32 s34, 0")
    A("s_mov_b32 s35, 0")
    A("s_barrier")
    for r in reads_for(0, 0): A(r)
    A.label("K1_cloop")
    A("s_cmp_eq_u32 s35, 2")
    A("s_cselect_b32 s36, %d, s70", -2*STAGE)
    A("s_cselect_b32 s35, -1, s35")
    A("s_add_u32 s35, s35, 1")
    for s in range(4):
        b = s & 1
        m = mfma_list(b)
        A("s_waitcnt lgkmcnt(0)")
        if s < 3:
            rd = reads_for(s + 1, b ^ 1)
            sched = [2, 2, 2, 2, 1, 1, 0, 0]
            k = 0
            for i in range(8):
                A(m[i])
                for _ in range(sched[i]):
                    A(rd[k]); k += 1
                if s == 2 and i == 6:
                    for j in range(3): A("v_add_u32 v%d, s36, v%d", XA + j, XA + j)
                if s == 2 and i == 7:
                    A("v_add_u32 v%d, s36, v%d", XA + 3, XA + 3)
                    A("v_add_u32 v%d, s36, v%d", WA, WA)
                    A("v_add_u32 v%d, s36, v%d", WA + 1, WA + 1)
        else:
            A(m[0])
            A("s_add_u32 s34, s34, 1")
            A("s_cmp_eq_u32 s34, 10")
            A("s_barrier")
            A("s_cbranch_scc1 K1_ctail")
            rd = reads_for(0, 0)
            sched = [2, 2, 2, 2, 2, 0, 0, 0]
            k = 0
            for i in range(8):
                if i > 0: A(m[i])
                for _ in range(sched[i]):
                    A(rd[k]); k += 1
            A("s_branch K1_cloop")
    A.label("K1_ctail")
    m = mfma_list(1)
    rd = ["ds_read_b128 v[16:19], v7", "ds_read_b128 v[20:23], v7 offset:512"]
    for ft in range(2):
        for mat in range(2):
            for i in range(4):
                rd.append("ds_read_b128 %s, v6 offset:%d" % (RR(CS + (mat*2 + ft)*16 + 4*i, 4), (mat*64 + ft*32 + 8*i)*4))
    k = 0
    for i in range(8):
        if i > 0: A(m[i])
        for _ in range(3):
            if k < len(rd) and k < 14:
                A(rd[k]); k += 1
    A("s_waitcnt lgkmcnt(4)")
    while k < len(rd):
        A(rd[k]); k += 1
    A("s_waitcnt lgkmcnt(0)")
    A("s_nop 7")
    T = 24
    cnt = 0
    for ft in range(2):
        for tt in range(2):
            st = 16 + 4*tt
            g0 = acc(ft, tt); u0 = acc(2 + ft, tt)
            cg = CS + (0*2 + ft)*16; cu = CS + (1*2 + ft)*16
            for p in range(2):
                po = 32 + 4*(cnt % 4); cnt += 1
                prs = [8*p + 2*q for q in range(4)]
                for q in prs:
                    A("v_pk_fma_f32 %s, %s, %s, %s op_sel_hi:[1,0,1]", RR(g0 + q, 2), RR(cg + q, 2), RR(st, 2), RR(g0 + q, 2))
                for n, q in enumerate(prs):
                    A("v_pk_mul_f32 %s, %s, %s op_sel:[0,1] op_sel_hi:[1,1]", RR(T + 2*n, 2), RR(g0 + q, 2), RR(st, 2))
                for n in range(8):
                    A("v_exp_f32 v%d, v%d", T + n, T + n)
                for q in prs:
                    A("v_pk_fma_f32 %s, %s, %s, %s op_sel_hi:[1,0,1]", RR(u0 + q, 2), RR(cu + q, 2), RR(st, 2), RR(u0 + q, 2))
                for n in range(4):
                    A("v_pk_fma_f32 %s, %s, %s, %s op_sel_hi:[1,0,0]", RR(T + 2*n, 2), RR(T + 2*n, 2), RR(st + 2, 2), RR(st + 2, 2))
                for n in range(8):
                    A("v_rcp_f32 v%d, v%d", T + n, T + n)
                for q in prs:
                    A("v_pk_mul_f32 %s, %s, %s", RR(g0 + q, 2), RR(g0 + q, 2), RR(u0 + q, 2))
                for n, q in enumerate(prs):
                    A("v_pk_mul_f32 %s, %s, %s", RR(g0 + q, 2), RR(g0 + q, 2), RR(T + 2*n, 2))
                for n, q in enumerate(prs):
                    A("v_cvt_pk_bf16_f32 v%d, v%d, v%d", po + n, g0 + q, g0 + q + 1)
                A("buffer_store_dwordx4 %s, v%d, s[40:43], s%d offen offset:%d", RR(po, 4), VST, 38 + ft, tt*2048 + p*512)
    A("s_endpgm")

def gen_loader(A):
    A.c("---------------- loader waves ----------------")
    A.label("K1_loader")
    A("s_sub_u32 s30, s30, 4")
    A("v_lshrrev_b32 v1, 3, v0")
    A("v_and_b32 v2, 7, v0")
    A("v_lshrrev_b32 v3, 4, v0")
    A("v_xor_b32 v4, v2, v3")
    A("v_lshlrev_b32 v4, 4, v4")
    A("v_xor_b32 v5, 64, v4")
    A("v_mul_u32_u24 v6, 1280, v1")
    A("v_add_u32 v8, v6, v4")
    A("v_add_u32 v9, v6, v5")
    A("v_add_u32 v9, 10240, v9")
    A("v_and_b32 v3, 1, v3")
    A("v_lshlrev_b32 v3, 2, v3")
    A("v_xor_b32 v4, v2, v3")
    A("v_mul_u32_u24 v6, 3456, v1")
    A("v_lshl_add_u32 v10, v4, 4, v6")
    A("s_waitcnt lgkmcnt(0)")
    srd(A, 40, 4, X_BYTES)
    srd(A, 44, 18, W_BYTES)
    srd(A, 48, 20, W_BYTES)
    srd(A, 52, 26, 256)
    srd(A, 56, 28, ST_BYTES, add=hex(WS_ST))
    A("s_lshl_b32 s31, s32, 2")
    A("s_add_u32 s31, s31, s30")
    A("s_mul_i32 s60, s31, %d", 64*1280)
    A("s_lshl_b32 s64, s31, 8")
    A("s_mul_i32 s61, s30, %d", 16*3456)
    A("s_lshl_b32 s31, s33, 7")
    A("s_add_u32 s61, s61, s31")
    A("s_lshl_b32 s62, s30, 13")
    A("s_lshl_b32 s63, s30, 11")
    A("s_add_u32 s63, s63, 32768")
    A("s_mov_b32 s65, 0")
    def issue():
        for j in range(4):
            A("s_add_u32 m0, s63, %d", (j >> 1)*8192 + (j & 1)*1024)
            if j & 1:
                A("s_add_u32 s31, s61, %d", 8*3456)
                A("buffer_load_dwordx4 v10, s[%d:%d], s31 offen lds", 44 + 4*(j >> 1), 47 + 4*(j >> 1))
            else:
                A("s_nop 0")
                A("buffer_load_dwordx4 v10, s[%d:%d], s61 offen lds", 44 + 4*(j >> 1), 47 + 4*(j >> 1))
        for i in range(8):
            A("s_add_u32 m0, s62, %d", i*1024)
            A("s_add_u32 s31, s60, %d", (i & ~1)*10240)
            A("buffer_load_dwordx4 v%d, s[40:43], s31 offen lds", 8 + (i & 1))
        A("s_add_u32 s60, s60, 128")
        A("s_add_u32 s61, s61, %d", 64*3456)
        A("s_cmp_eq_u32 s65, 2")
        A("s_cselect_b32 s31, %d, s70", -2*STAGE)
        A("s_cselect_b32 s65, -1, s65")
        A("s_add_u32 s65, s65, 1")
        A("s_add_u32 s62, s62, s31")
        A("s_add_u32 s63, s63, s31")
    A.label("K1_lpro")
    issue()
    A("s_cmp_lg_u32 s65, 0")
    A("s_cbranch_scc1 K1_lpro")
    w_addr_setup(A, 12, 13, 5, 6)
    A("s_and_b32 s31, s30, 1")
    A("s_lshl_b32 s31, s31, 6")
    A("v_xor_b32 v12, s31, v12")
    A("s_lshr_b32 s31, s30, 1")
    A("s_lshl_b32 s31, s31, 13")
    A("v_add_u32 v12, s31, v12")
    for r in range(32, 36): A("v_mov_b32 v%d, 0", r)
    A("v_mov_b32 v14, 0")
    A("v_lshlrev_b32 v15, 2, v0")
    A("s_mov_b32 s34, 0")
    A("s_mov_b32 s35, 0")
    A("s_waitcnt vmcnt(24)")
    A("s_barrier")
    A.label("K1_lloop")
    for s in range(4):
        for e2 in range(2):
            A("ds_read_b64_tr_b16 %s, v12 offset:%d", RR(16 + 4*s + 2*e2, 2), s*2048 + e2*512)
    A("s_sub_u32 s31, s34, 1")
    A("s_cmp_gt_u32 s31, 6")
    A("s_cbranch_scc1 K1_lnoissue")
    issue()
    A.label("K1_lnoissue")
    A("s_cmp_lg_u32 s34, 7")
    A("s_cbranch_scc1 K1_lnopoll")
    A("buffer_load_dword v40, v14, s[52:55], 0 offen sc1")
    A.label("K1_lnopoll")
    A("s_cmp_eq_u32 s35, 2")
    A("s_cselect_b32 s36, %d, s70", -2*STAGE)
    A("s_cselect_b32 s35, -1, s35")
    A("s_add_u32 s35, s35, 1")
    A("v_add_u32 v12, s36, v12")
    A("s_waitcnt lgkmcnt(0)")
    for q in range(0, 16, 2):
        A("v_lshlrev_b32 v36, 16, v%d", 16 + q)
        A("v_and_b32 v37, 0xffff0000, v%d", 16 + q)
        A("v_lshlrev_b32 v38, 16, v%d", 17 + q)
        A("v_and_b32 v39, 0xffff0000, v%d", 17 + q)
        for j in range(4):
            A("v_add_f32 v%d, v%d, v%d", 32 + j, 32 + j, 36 + j)
    A("s_cmp_ge_u32 s34, 7")
    A("s_cbranch_scc1 K1_llate")
    A("s_waitcnt vmcnt(12)")
    A.label("K1_lbar")
    A("s_add_u32 s34, s34, 1")
    A("s_barrier")
    A("s_branch K1_lloop")
    A.label("K1_llate")
    A("s_cmp_eq_u32 s34, 7")
    A("s_cbranch_scc0 K1_llate8")
    A("s_waitcnt vmcnt(13)")
    A("s_branch K1_lbar")
    A.label("K1_llate8")
    A("s_cmp_eq_u32 s34, 8")
    A("s_cbranch_scc0 K1_lfin")
    A("s_waitcnt vmcnt(0)")
    A("s_mov_b32 s37, 0")
    A("v_readfirstlane_b32 s31, v40")
    A("s_nop 0")
    A("s_cmp_lt_u32 s31, %d", NHELP)
    A("s_cbranch_scc1 K1_lbar")
    A("buffer_load_dword v41, v15, s[56:59], s64 offen sc1")
    A("s_mov_b32 s37, 1")
    A("s_branch K1_lbar")
    A.label("K1_lfin")
    A("s_cmp_eq_u32 s37, 1")
    A("s_cbranch_scc1 K1_lgot")
    A("s_mov_b32 s38, 0")
    A.label("K1_lspin")
    A("buffer_load_dword v40, v14, s[52:55], 0 offen sc1")
    A("s_add_u32 s38, s38, 1")
    A("s_waitcnt vmcnt(0)")
    A("v_readfirstlane_b32 s31, v40")
    A("s_cmp_gt_u32 s38, 0x100000")
    A("s_cbranch_scc1 K1_lspun")
    A("s_cmp_lt_u32 s31, %d", NHELP)
    A("s_cbranch_scc1 K1_lspin")
    A.label("K1_lspun")
    A("buffer_load_dword v41, v15, s[56:59], s64 offen sc1")
    A.label("K1_lgot")
    A("v_add_f32 v32, v32, v33")
    A("v_add_f32 v34, v34, v35")
    A("v_add_f32 v32, v32, v34")
    A("v_mov_b32 v33, v32")
    A("s_lshl_b32 s31, s30, 7")
    A("s_add_u32 s31, s31, %d", L_CS)
    A("v_permlane32_swap_b32 v32, v33")
    A("v_and_b32 v36, 31, v0")
    A("v_add_f32 v32, v32, v33")
    A("v_lshlrev_b32 v36, 2, v36")
    A("v_add_u32 v36, s31, v36")
    A("ds_write_b32 v36, v32")
    A("s_lshl_b32 s31, s30, 10")
    A("s_add_u32 s31, s31, %d", L_ST)
    A("v_lshlrev_b32 v36, 4, v0")
    A("v_add_u32 v36, s31, v36")
    A("s_waitcnt vmcnt(0)")
    A("v_and_b32 v42, 0xffff0000, v41")
    A("v_lshlrev_b32 v44, 16, v41")
    A("v_rcp_f32 v45, v42")
    A("v_xor_b32 v44, 0x80000000, v44")
    A("v_mul_f32 v46, v42, v42")
    A("v_mul_f32 v45, %s, v45", f2h(-LOG2E))
    A("v_mov_b32 v47, 0")
    A("ds_write_b128 v36, v[44:47]")
    A("s_waitcnt lgkmcnt(0)")
    A("s_barrier")
    A("s_endpgm")

def gen_helper(A):
    A.c("---------------- helper workgroups ----------------")
    A.label("K1_helper")
    A("s_mul_i32 s35, s35, 20")
    A("s_lshl_b32 s36, s36, 2")
    A("s_add_u32 s32, s35, s36")
    A("s_add_u32 s32, s32, s34")
    A("s_lshl_b32 s33, s32, 3")
    A("s_add_u32 s33, s33, s30")
    A("v_lshrrev_b32 v1, 3, v0")
    A("v_and_b32 v2, 7, v0")
    A("s_waitcnt lgkmcnt(0)")
    srd(A, 40, 4, X_BYTES)
    srd(A, 44, 6, X_BYTES)
    srd(A, 48, 8, X_BYTES)
    srd(A, 52, 10, 640*8)
    srd(A, 56, 22, W_BYTES)
    srd(A, 60, 28, WS_ST + ST_BYTES)
    srd(A, 64, 26, 256)
    XD = 16
    KD = 56
    VD = 100
    SK = 132
    SF = 148
    A("v_mul_u32_u24 v3, 1280, v1")
    A("v_lshl_add_u32 v3, v2, 4, v3")
    A("s_min_u32 s69, s33, 255")
    A("s_mul_i32 s34, s69, %d", 8*1280)
    for i in range(10):
        A("buffer_load_dwordx4 %s, v3, s[40:43], s34 offen offset:%d", RR(XD + 4*i, 4), 128*i)
    A("s_min_u32 s31, s33, 269")
    A("s_mul_i32 s35, s31, 205")
    A("s_lshr_b32 s35, s35, 10")
    A("s_mul_i32 s36, s35, 5")
    A("s_sub_u32 s36, s31, s36")
    A("v_lshrrev_b32 v4, 4, v0")
    A("v_mul_u32_u24 v4, 1280, v4")
    A("v_and_b32 v5, 15, v0")
    A("v_lshl_add_u32 v4, v5, 4, v4")
    A("s_mul_i32 s37, s35, %d", 32*1280)
    A("s_lshl_b32 s31, s36, 8")
    A("s_add_u32 s37, s37, s31")
    A("s_lshl_b32 s38, s30, 13")
    for i in range(8):
        A("s_add_u32 m0, s38, %d", 1024*i)
        A("s_add_u32 s31, s37, %d", 4*1280*i)
        A("buffer_load_dwordx4 v4, s[56:59], s31 offen lds")
    A("s_mul_i32 s39, s32, 26")
    A("s_lshr_b32 s39, s39, 8")
    A("s_mul_i32 s31, s39, 10")
    A("s_sub_u32 s68, s32, s31")
    A("s_lshl_b32 s39, s39, 9")
    A("s_lshl_b32 s31, s30, 6")
    A("s_add_u32 s39, s39, s31")
    A("v_lshlrev_b32 v5, 3, v1")
    A("v_add_u32 v5, s39, v5")
    A("v_mul_u32_u24 v6, 1280, v5")
    A("v_lshl_add_u32 v6, v2, 4, v6")
    A("s_lshl_b32 s31, s68, 7")
    A("v_add_u32 v6, s31, v6")
    A("v_lshlrev_b32 v7, 6, v2")
    A("s_lshl_b32 s31, s68, 9")
    for i in range(4):
        A("buffer_load_dwordx4 %s, v7, s[52:55], s31 offen offset:%d", RR(SK + 4*i, 4), 16*i)
    for i in range(11):
        A("v_add_u32 v8, %d, v6", (i - 3)*1280)
        A("buffer_load_dwordx4 %s, v8, s[44:47], 0 offen", RR(KD + 4*i, 4))
        if i >= 3:
            A("buffer_load_dwordx4 %s, v8, s[48:51], 0 offen", RR(VD + 4*(i - 3), 4))
    A("s_waitcnt vmcnt(31)")
    U = 180
    for i in range(40):
        A("v_lshlrev_b32 v%d, 16, v%d", U + i, XD + i)
        A("v_and_b32 v%d, 0xffff0000, v%d", XD + i, XD + i)
    vals = [U + i for i in range(40)] + [XD + i for i in range(40)]
    for j in range(4): A("v_add_f32 v%d, v%d, v%d", 10 + j, vals[j], vals[4 + j])
    for i in range(8, 80): A("v_add_f32 v%d, v%d, v%d", 10 + (i & 3), 10 + (i & 3), vals[i])
    def red8(r):
        A("v_add_f32 v%d, v%d, v%d", r, r, r + 1)
        A("v_add_f32 v%d, v%d, v%d", r + 2, r + 2, r + 3)
        A("v_add_f32 v%d, v%d, v%d", r, r, r + 2)
        A("s_nop 1")
        A("v_add_f32_dpp v%d, v%d, v%d quad_perm:[1,0,3,2] row_mask:0xf bank_mask:0xf", r + 1, r, r)
        A("s_nop 1")
        A("v_add_f32_dpp v%d, v%d, v%d quad_perm:[2,3,0,1] row_mask:0xf bank_mask:0xf", r, r + 1, r + 1)
        A("s_nop 1")
        A("v_add_f32_dpp v%d, v%d, v%d row_half_mirror row_mask:0xf bank_mask:0xf", r + 1, r, r)
    red8(10)
    A("v_mul_f32 v9, %s, v11", f2h(1.0/640))
    for i in range(80): A("v_sub_f32 v%d, v%d, v9", vals[i], vals[i])
    for j in range(4): A("v_mul_f32 v%d, v%d, v%d", 10 + j, vals[j], vals[j])
    for i in range(4, 80): A("v_fmac_f32 v%d, v%d, v%d", 10 + (i & 3), vals[i], vals[i])
    red8(10)
    A("v_mul_f32 v10, %s, v11", f2h(1.0/640))
    A("v_cvt_pk_bf16_f32 v10, v10, v10")
    A("v_lshlrev_b32 v10, 16, v10")
    A("v_add_f32 v10, %s, v10", f2h(1e-5))
    A("v_cvt_pk_bf16_f32 v10, v10, v10")
    A("v_lshlrev_b32 v10, 16, v10")
    A("v_sqrt_f32 v10, v10")
    A("s_nop 0")
    A("v_cvt_pk_bf16_f32 v10, v9, v10")
    A("v_lshlrev_b32 v11, 2, v1")
    A("s_lshl_b32 s31, s69, 5")
    A("s_add_u32 s31, s31, %s", hex(WS_ST))
    A("v_add_u32 v11, s31, v11")
    A("v_cmp_eq_u32 vcc, 0, v2")
    A("v_bfrev_b32 v12, 1")
    A("s_nop 0")
    A("v_cndmask_b32 v11, v12, v11, vcc")
    A("buffer_store_dword v10, v11, s[60:63], 0 offen sc1")
    A("s_waitcnt vmcnt(0)")
    A("s_barrier")
    A("s_cmp_lg_u32 s30, 0")
    A("s_cbranch_scc1 K1_hnoflag")
    A("v_mov_b32 v10, 1")
    A("v_cmp_eq_u32 vcc, 0, v0")
    A("v_mov_b32 v11, 0")
    A("s_nop 0")
    A("v_cndmask_b32 v11, v12, v11, vcc")
    A("buffer_atomic_add v10, v11, s[64:67], 0 offen sc1")
    A.label("K1_hnoflag")
    A("s_cmp_ge_u32 s33, 270")
    A("s_cbranch_scc1 K1_hnowd")
    A("v_lshrrev_b32 v10, 5, v0")
    A("v_lshlrev_b32 v11, 12, v10")
    A("v_bfe_u32 v10, v0, 2, 3")
    A("v_lshl_add_u32 v11, v10, 8, v11")
    A("v_and_b32 v10, 3, v0")
    A("v_lshl_add_u32 v11, v10, 3, v11")
    A("v_add_u32 v11, s38, v11")
    for n in range(8):
        for e2 in range(2):
            A("ds_read_b64_tr_b16 %s, v11 offset:%d", RR(XD + 4*n + 2*e2, 2), n*32 + e2*2048)
        if n == 3: A("s_waitcnt lgkmcnt(0)")
    A("s_mul_i32 s31, s35, 40")
    A("s_lshl_b32 s34, s36, 3")
    A("s_add_u32 s31, s31, s34")
    A("s_lshl_b32 s31, s31, 10")
    A("s_add_u32 s31, s31, %s", hex(WS_WD))
    A("s_add_u32 s34, s31, 4096")
    A("v_lshlrev_b32 v10, 4, v0")
    A("s_waitcnt lgkmcnt(0)")
    for n in range(8):
        A("buffer_store_dwordx4 %s, v10, s[60:63], s%d offen offset:%d", RR(XD + 4*n, 4), 31 if n < 4 else 34, (n & 3)*1024)
    A.label("K1_hnowd")
    A("v_lshlrev_b32 v10, 4, v0")
    for j in range(4): A("v_mov_b32 v%d, -1", 12 + j)
    A("s_lshl_b32 s31, s33, 13")
    A("s_add_u32 s31, s31, %s", hex(WS_YT))
    A("s_add_u32 s34, s31, 4096")
    for n in range(8):
        A("buffer_store_dwordx4 v[12:15], v10, s[60:63], s%d offen offset:%d", 31 if n < 4 else 34, (n & 3)*1024)
    for j in range(8):
        A("v_lshlrev_b32 v%d, 16, v%d", SF + 4*j, SK + 2*j)
        A("v_and_b32 v%d, 0xffff0000, v%d", SF + 4*j + 1, SK + 2*j)
        A("v_lshlrev_b32 v%d, 16, v%d", SF + 4*j + 2, SK + 2*j + 1)
        A("v_and_b32 v%d, 0xffff0000, v%d", SF + 4*j + 3, SK + 2*j + 1)
    A("v_lshlrev_b32 v7, 15, v2")
    A("v_lshl_add_u32 v7, v5, 1, v7")
    A("s_lshl_b32 s31, s68, 18")
    A("s_add_u32 s31, s31, %s", hex(WS_UT))
    KU = 180; VU = 192; KS = 200; PO = 208
    for j in range(8):
        def unp(dst, src):
            if j & 1: A("v_and_b32 v%d, 0xffff0000, v%d", dst, src)
            else: A("v_lshlrev_b32 v%d, 16, v%d", dst, src)
        for i in range(11): unp(KU + i, KD + 4*i + (j >> 1))
        for i in range(8): unp(VU + i, VD + 4*i + (j >> 1))
        for t in range(8): A("v_mul_f32 v%d, v%d, v%d", KS + t, SF + 4*j + 3, KU + t)
        for d in range(1, 4):
            for t in range(8): A("v_fmac_f32 v%d, v%d, v%d", KS + t, SF + 4*j + 3 - d, KU + t + d)
        for t in range(8): A("v_mul_f32 v%d, v%d, v%d", KS + t, KS + t, VU + t)
        po = PO + 4*j
        for t in range(4): A("v_cvt_pk_bf16_f32 v%d, v%d, v%d", po + t, KS + 2*t, KS + 2*t + 1)
        A("buffer_store_dwordx4 %s, v7, s[60:63], s31 offen", RR(po, 4))
        A("s_add_u32 s31, s31, 4096")
```

```python
from asmlib import *
from k1 import *

CPY = 4160
CONV_H = 4*CPY
CONV_SZ = CONV_H + 4608
L_RED = 3*CONV_SZ
L_XT = L_RED + 61440
L_YT = L_XT + 4*3072
K2_LDS = L_YT + 80*160 + 1024
LA = 7
GACC = 16
CACC = 96
CFR = [128, 192]
def buf(d):
    return 256 + 36*d if d < 7 else 184 + 36*(d - 7)
VH = 1
VW = 5
VX = 6
VSTAT = 9
VA = 10; VB = 11
VY0 = 12; VY2 = 13
T0 = 14; T1 = 15

def gacc(nt, i): return GACC + (i*5 + nt)*4

def step_loads(d):
    b = buf(d)
    out = []
    hl = ["buffer_load_dwordx4 %s, v%d, s[40:43], s60 offen" % (RR(b + 4*i, 4), VH + i) for i in range(4)]
    wl = ["buffer_load_dwordx4 %s, v%d, s[44:47], s%d offen offset:%d" % (RR(b + 16 + 4*j, 4), VW, 61 if j < 4 else 62, (j & 3)*1024) for j in range(5)]
    order = [wl[0], hl[0], wl[1], wl[2], wl[3], wl[4], hl[1], hl[2], hl[3]]
    out = [[x] for x in order]
    out[5] += ["s_add_u32 s61, s61, 40960", "s_add_u32 s62, s62, 40960"]
    out[8] += ["s_add_u32 s60, s60, 4096"]
    return out

def step_mfma(d):
    b = buf(d)
    out = []
    for i in range(4):
        for nt in range(5):
            a = RR(gacc(nt, i), 4)
            out.append("v_mfma_f32_16x16x32_bf16 %s, %s, %s, %s" % (a, RR(b + 16 + 4*nt, 4), RR(b + 4*i, 4), a))
    return out

def interleave(A, main, fill, start=0, end=None):
    n = len(main)
    if end is None: end = n
    k = 0
    m = len(fill)
    for i in range(n):
        A(main[i])
        if i >= start:
            while k < m and (k * (end - start) <= (i - start) * m or i >= end - 1):
                for x in fill[k]: A(x)
                k += 1
    assert k == m

def gen_k2(A):
    A.label("k2_kernel")
    A("s_cmp_ge_u32 s2, 256")
    A("s_cbranch_scc1 K2_end")
    A("s_load_dwordx16 s[4:19], s[0:1], 0")
    A("s_load_dwordx8 s[20:27], s[0:1], 64")
    A("s_load_dwordx2 s[28:29], s[0:1], 96")
    A("v_lshrrev_b32 v1, 6, v0")
    A("v_and_b32 v0, 63, v0")
    A("s_and_b32 s31, s2, 7")
    A("v_readfirstlane_b32 s30, v1")
    A("s_lshr_b32 s34, s2, 3")
    A("s_lshr_b32 s32, s31, 1")
    A("s_lshl_b32 s32, s32, 3")
    A("s_and_b32 s35, s34, 7")
    A("s_add_u32 s32, s32, s35")
    A("s_and_b32 s33, s31, 1")
    A("s_lshl_b32 s33, s33, 2")
    A("s_lshr_b32 s35, s34, 3")
    A("s_add_u32 s33, s33, s35")
    A("s_lshl_b32 s35, s31, 4")
    A("s_lshr_b32 s36, s34, 1")
    A("s_add_u32 s35, s35, s36")
    A("s_mul_i32 s35, s35, 5")
    A("s_and_b32 s36, s34, 1")
    A("s_mul_i32 s37, s36, 3")
    A("s_add_u32 s35, s35, s37")
    A("s_add_u32 s35, s35, s30")
    A("s_sub_u32 s37, 3, s36")
    A("s_mul_i32 s38, s30, 9")
    A("s_sub_u32 s31, s30, 1")
    A("s_mul_i32 s31, s31, 18")
    A("s_cmp_eq_u32 s36, 1")
    A("s_cselect_b32 s31, s31, 27")
    A("s_cmp_lt_u32 s30, s37")
    A("s_cselect_b32 s38, s38, s31")
    A("s_sub_u32 s39, 2, s36")
    A("v_lshlrev_b32 v%d, 4, v0", VW)
    A("s_lshl_b32 s31, s30, 10")
    A("v_add_u32 v%d, s31, v%d", VH, VW)
    for i in range(1, 4):
        A("v_xor_b32 v%d, %d, v%d", VH + i, 1024*i, VH)
    A("s_waitcnt lgkmcnt(0)")
    srd(A, 40, 28, HF_BYTES)
    srd(A, 44, 28, WD_BYTES, add=hex(WS_WD))
    A("s_mul_i32 s60, s32, 54")
    A("s_add_u32 s60, s60, s38")
    A("s_lshl_b32 s60, s60, 12")
    A("s_mul_i32 s61, s38, 40960")
    A("s_mul_i32 s31, s33, 5120")
    A("s_add_u32 s61, s61, s31")
    A("s_add_u32 s62, s61, 4096")
    A("s_cmp_lt_u32 s30, s37")
    A("s_cbranch_scc1 K2_conv")
    for d in range(2):
        for g in step_loads(d):
            for x in g: A(x)
    common_setup(A)
    for d in range(2, LA):
        if d == LA - 1:
            for r in range(GACC, GACC + 80): A("v_mov_b32 v%d, 0", r)
            A("s_waitcnt vmcnt(%d)", 9*(LA - 1))
        for g in step_loads(d):
            for x in g: A(x)
    A.label("K2_sloop")
    for d in range(9):
        A("s_waitcnt vmcnt(%d)", 9*(LA - 1))
        interleave(A, step_mfma(d), step_loads((d + LA) % 9), 0, 19)
    A("s_sub_u32 s39, s39, 1")
    A("s_cmp_lg_u32 s39, 0")
    A("s_cbranch_scc1 K2_sloop")
    A("s_branch K2_final")
    gen_conv(A)
    gen_final(A)
    A.label("K2_end")
    A("s_endpgm")

def common_setup(A):
    srd(A, 48, 4, X_BYTES)
    srd(A, 52, 28, ST_BYTES, add=hex(WS_ST))
    for i in range(3):
        A("v_add_u32 v%d, %d, v0", T0, 64*i)
        A("v_mul_u32_u24 v%d, 205, v%d", T1, T0)
        A("v_lshrrev_b32 v%d, 11, v%d", T1, T1)
        A("v_mul_u32_u24 v%d, %d, v%d", VX + i, 1280 - 160, T1)
        A("v_lshl_add_u32 v%d, v%d, 4, v%d", VX + i, T0, VX + i)
    A("v_cmp_gt_u32 vcc, 32, v0")
    A("v_bfrev_b32 v%d, 1", T0)
    A("v_lshrrev_b32 v%d, 3, v0", T1)
    A("v_cndmask_b32 v%d, v%d, v%d, vcc", VX + 2, T0, VX + 2)
    A("v_lshlrev_b32 v%d, 12, v%d", VY0, T1)
    A("v_and_b32 v%d, 7, v0", T1)
    A("v_lshl_add_u32 v%d, v%d, 4, v%d", VY0, T1, VY0)
    A("v_cndmask_b32 v%d, v%d, v%d, vcc", VY2, T0, VY0)
    A("s_lshl_b32 s31, s32, 2")
    A("s_add_u32 s31, s31, s30")
    A("s_mul_i32 s63, s31, %d", 16*1280)
    A("s_lshl_b32 s64, s31, 6")
    A("s_mul_i32 s31, s33, 160")
    A("s_add_u32 s63, s63, s31")
    A("s_mul_i32 s65, s30, 3072")
    A("s_add_u32 s65, s65, %d", L_XT)
    for i in range(3):
        A("s_add_u32 m0, s65, %d", 1024*i)
        A("s_nop 0")
        A("buffer_load_dwordx4 v%d, s[48:51], s63 offen lds", VX + i)
    A("v_and_b32 v%d, 15, v0", T0)
    A("v_lshlrev_b32 v%d, 2, v%d", T0, T0)
    A("buffer_load_dword v%d, v%d, s[52:55], s64 offen", VSTAT, T0)

def gen_conv(A):
    A.c("---------------- conv waves ----------------")
    A.label("K2_conv")
    A("s_lshl_b32 s66, s35, 12")
    A("s_add_u32 s31, s66, %s", hex(WS_UT))
    srd(A, 68, 28, 4096, add="s31")
    srd(A, 72, 12, 4096, add="s66")
    A("s_mul_i32 s67, s30, %d", CONV_SZ)
    RAW = 128
    A("v_add_u32 v%d, -8, v%d", T0, VW)
    A("v_cmp_eq_u32 vcc, 0, v0")
    A("v_bfrev_b32 v%d, 1", T1)
    A("s_nop 0")
    A("v_cndmask_b32 v%d, v%d, v%d, vcc", T0, T0, T1)
    for j in range(4):
        A("buffer_load_dwordx4 %s, v%d, s[68:71], 0 offen offset:%d", RR(RAW + 8*j + 2, 4), VW, 1024*j)
        if j == 0:
            A("buffer_load_dwordx2 %s, v%d, s[68:71], 0 offen", RR(RAW, 2), T0)
        else:
            A("buffer_load_dwordx2 %s, v%d, s[68:71], 0 offen offset:%d", RR(RAW + 8*j, 2), VW, 1024*j - 8)
    A("s_add_u32 m0, s67, %d", CONV_H + 512)
    A("s_nop 0")
    for j in range(4):
        A("buffer_load_dwordx4 v%d, s[72:75], 0 offen offset:%d lds", VW, 1024*j)
    A("s_lshr_b32 s31, s35, 1")
    A("s_lshl_b32 s31, s31, 2")
    A("s_load_dword s76, s[14:15], s31")
    common_setup(A)
    for r in range(GACC, GACC + 80): A("v_mov_b32 v%d, 0", r)
    A("v_lshlrev_b32 v%d, 3, v0", T0)
    A("v_add_u32 v%d, s67, v%d", T0, T0)
    A("ds_write_b64 v%d, %s offset:%d", T0, RR(GACC, 2), CONV_H)
    A("v_bfe_u32 v%d, v0, 2, 2", T0)
    A("v_mul_u32_u24 v%d, %d, v%d", VA, CPY, T0)
    A("v_and_b32 v%d, 3, v0", T0)
    A("v_lshl_add_u32 v%d, v%d, 3, v%d", VA, T0, VA)
    A("v_add_u32 v%d, s67, v%d", VA, VA)
    A("ds_write_b64 v%d, %s", VA, RR(GACC, 2))
    A("v_lshrrev_b32 v%d, 4, v0", T0)
    A("v_lshlrev_b32 v%d, 4, v%d", T1, T0)
    A("v_sub_u32 v%d, v%d, v%d", VA, VA, T1)
    A("v_add_u32 v%d, 56, v%d", VA, VA)
    A("v_and_b32 v%d, 15, v0", VB)
    A("v_lshlrev_b32 v%d, 5, v%d", VB, VB)
    A("v_add3_u32 v%d, v%d, v%d, s67", VB, VB, T1)
    A("v_add_u32 v%d, %d, v%d", VB, CONV_H + 480 - 448, VB)
    A("v_add_u32 v%d, s67, v%d", T0, VW)
    TMP = 160
    for j in range(4):
        A("s_waitcnt vmcnt(%d)", 8 + 2*(3 - j))
        d = RAW + 8*j
        t = TMP + 12*j
        for k in range(4): A("v_alignbit_b32 v%d, v%d, v%d, 16", t + k, d + 2 + k, d + 1 + k)
        for k in range(4): A("v_mov_b32 v%d, v%d", t + 4 + k, d + 1 + k)
        for k in range(4): A("v_alignbit_b32 v%d, v%d, v%d, 16", t + 8 + k, d + 1 + k, d + k)
        A("ds_write_b128 v%d, %s offset:%d", T0, RR(d + 2, 4), 32 + 1024*j)
        for r in range(1, 4):
            A("ds_write_b128 v%d, %s offset:%d", T0, RR(t + 4*(r - 1), 4), r*CPY + 32 + 1024*j)
        if j == 1: A("s_waitcnt lgkmcnt(0)")
    A("s_waitcnt vmcnt(4) lgkmcnt(0)")
    def afr(b, p): return CFR[b] + 4*p
    def bfr(b, r): return CFR[b] + 32 + 4*r
    def creads(c, b):
        out = []
        for i in range(8):
            out.append(["ds_read_b128 %s, v%d offset:%d" % (RR(bfr(b, i), 4), VB, 512*i + 64*(7 - c))])
            out.append(["ds_read_b64_tr_b16 %s, v%d offset:%d" % (RR(afr(b, i), 2), VA, 512*i + 64*c + 8)])
            out.append(["ds_read_b64_tr_b16 %s, v%d offset:%d" % (RR(afr(b, i) + 2, 2), VA, 512*i + 64*c)])
        return out
    rd = creads(0, 0)
    for k, g in enumerate(rd):
        A(g[0])
        if k == 11: A("s_waitcnt lgkmcnt(2)")
    pre = []
    for d in range(LA): pre += step_loads(d)
    for c in range(8):
        b = c & 1
        A("s_waitcnt lgkmcnt(0)")
        m = []
        seen = set()
        for p in range(8):
            for r in range(8 - p):
                q = p + r
                a = RR(CACC + 4*q, 4)
                cin = "0" if (c == 0 and q not in seen) else a
                seen.add(q)
                m.append("v_mfma_f32_16x16x32_bf16 %s, %s, %s, %s" % (a, RR(afr(b, p), 4), RR(bfr(b, r), 4), cin))
        fill = creads(c + 1, b ^ 1) if c < 7 else []
        lo = pre[8*c: 8*c + 8]
        merged = []
        fi = 0
        for k in range(8):
            if k < len(lo): merged.append(lo[k])
            merged += fill[3*k: 3*k + 3]
        if c == 7:
            A("v_lshrrev_b32 v%d, 4, v0", T0)
            A("v_lshlrev_b32 v%d, 3, v%d", T0, T0)
            A("v_and_b32 v%d, 15, v0", T1)
            A("v_lshl_add_u32 v%d, v%d, 5, v%d", T0, T1, T0)
            A("v_add_u32 v%d, s67, v%d", T0, T0)
            for q in range(8):
                merged.append(["ds_read_b64 %s, v%d offset:%d" % (RR(CFR[0] + 2*q, 2), T0, 512*q + 32)])
        interleave(A, m, merged, 0, 32)
    A("s_and_b32 s31, s35, 1")
    A("s_lshl_b32 s31, s31, 4")
    A("s_waitcnt lgkmcnt(0)")
    A("s_lshr_b32 s76, s76, s31")
    A("s_lshl_b32 s76, s76, 16")
    U = CFR[0] + 16
    for q in range(8):
        for h in range(2):
            A("v_lshlrev_b32 v%d, 16, v%d", U + 4*q + 2*h, CFR[0] + 2*q + h)
            A("v_and_b32 v%d, 0xffff0000, v%d", U + 4*q + 2*h + 1, CFR[0] + 2*q + h)
    for k in range(32):
        A("v_fmac_f32 v%d, s76, v%d", CACC + k, U + k)
    for k in range(16):
        A("v_cvt_pk_bf16_f32 v%d, v%d, v%d", CFR[0] + k, CACC + 2*k, CACC + 2*k + 1)
    for k in range(16):
        A("v_min_u32 v%d, -2, v%d", CFR[0] + k, CFR[0] + k)
    for q in range(8):
        A("ds_write_b64 v%d, %s offset:%d", T0, RR(CFR[0] + 2*q, 2), CONV_H + 512*q)
    A("v_add_u32 v%d, s67, v%d", T1, VW)
    A("s_add_u32 s31, s66, %s", hex(WS_YT))
    srd(A, 68, 28, 4096, add="s31")
    A("s_waitcnt vmcnt(40) lgkmcnt(0)")
    for j in range(4):
        A("ds_read_b128 %s, v%d offset:%d", RR(CACC + 4*j, 4), T1, CONV_H + 1024*j)
    for j in range(4):
        A("s_waitcnt lgkmcnt(%d)", 3 - j)
        A("buffer_store_dwordx4 %s, v%d, s[68:71], 0 offen offset:%d sc1", RR(CACC + 4*j, 4), VW, 1024*j)

def gen_final(A):
    A.c("---------------- final pass + epilogue ----------------")
    A.label("K2_final")
    XR = 112
    XF = 124
    XN = 144
    YR = 164
    RS = 176; NM = 177; VR = 178; VT = 179
    srd(A, 56, 28, YT_BYTES, add=hex(WS_YT))
    A("s_mul_i32 s66, s33, 80")
    A("s_mul_i32 s31, s30, 20")
    A("s_add_u32 s66, s66, s31")
    A("s_lshl_b32 s66, s66, 12")
    A("s_lshl_b32 s31, s32, 7")
    A("s_add_u32 s66, s66, s31")
    A("s_add_u32 s67, s66, 0x8000")
    A("s_add_u32 s76, s66, 0x10000")
    yl = ["buffer_load_dwordx4 %s, v%d, s[56:59], s66 offen sc1" % (RR(YR, 4), VY0),
          "buffer_load_dwordx4 %s, v%d, s[56:59], s67 offen sc1" % (RR(YR + 4, 4), VY0),
          "buffer_load_dwordx4 %s, v%d, s[56:59], s76 offen sc1" % (RR(YR + 8, 4), VY2)]
    xprep = [["v_and_b32 v%d, 15, v0" % VR], ["v_mul_u32_u24 v%d, 160, v%d" % (VR, VR)], ["v_lshrrev_b32 v%d, 4, v0" % VT],
             ["v_lshl_add_u32 v%d, v%d, 3, v%d" % (VR, VT, VR)], ["v_add_u32 v%d, s65, v%d" % (VR, VR)]]
    xprep += [["ds_read_b64 %s, v%d offset:%d" % (RR(XR + 2*nt, 2), VR, 32*nt)] for nt in range(5)]
    xprep += [["v_and_b32 v%d, 0xffff0000, v%d" % (RS, VSTAT)], ["v_lshlrev_b32 v%d, 16, v%d" % (NM, VSTAT)], ["v_rcp_f32 v%d, v%d" % (RS, RS)]]
    xp2 = [["s_waitcnt lgkmcnt(0)", "v_mul_f32 v%d, v%d, v%d" % (NM, NM, RS)]]
    for k in range(10):
        xp2.append(["v_lshlrev_b32 v%d, 16, v%d" % (XF + 2*k, XR + k)])
        xp2.append(["v_and_b32 v%d, 0xffff0000, v%d" % (XF + 2*k + 1, XR + k)])
    xp3 = [["v_fma_f32 v%d, v%d, v%d, -v%d" % (XN + k, XF + k, RS, NM)] for k in range(20)]
    YSTEP = 5
    for d in range(9):
        n = 9*(LA - 1) if d < 9 - LA + 1 else 9*(8 - d)
        if d > YSTEP: n += 3
        A("s_waitcnt vmcnt(%d)", n)
        if d < 9 - LA: fill = step_loads(d + LA)
        elif d == 2: fill = xprep
        elif d == 3: fill = xp2
        elif d == 4: fill = xp3
        elif d == YSTEP: fill = [[x] for x in yl]
        else: fill = []
        interleave(A, step_mfma(d), fill, 0, 19)
    for i in range(1, 4):
        A("s_xor_b32 s31, s30, %d", i)
        A("s_mul_i32 s31, s31, 15360")
        A("s_add_u32 s31, s31, %d", L_RED + (i - 1)*5120)
        A("v_add_u32 v%d, s31, v%d", 180 + i, VW)
    for i in range(1, 4):
        if i == 3: A("s_nop 4")
        for nt in range(5):
            A("ds_write_b128 v%d, %s offset:%d", 180 + i, RR(gacc(nt, i), 4), 1024*nt)
    A("s_mov_b32 s77, 0")
    A.label("K2_ychk")
    A("s_waitcnt vmcnt(0)")
    A("v_max3_u32 v%d, v%d, v%d, v%d", VT, YR, YR + 1, YR + 2)
    for k in range(3, 11, 2):
        A("v_max3_u32 v%d, v%d, v%d, v%d", VT, VT, YR + k, YR + k + 1)
    A("v_max_u32 v%d, v%d, v%d", VT, VT, YR + 11)
    A("v_cmp_eq_u32 vcc, -1, v%d", VT)
    A("s_add_u32 s77, s77, 1")
    A("s_cmp_gt_u32 s77, 0x100000")
    A("s_cbranch_scc1 K2_yok")
    A("s_nop 2")
    A("s_cbranch_vccz K2_yok")
    for x in yl: A(x)
    A("s_branch K2_ychk")
    A.label("K2_yok")
    A("v_lshrrev_b32 v%d, 3, v0", VT)
    A("v_mul_u32_u24 v%d, 160, v%d", VT, VT)
    A("v_and_b32 v%d, 7, v0", T0)
    A("v_lshl_add_u32 v%d, v%d, 4, v%d", VT, T0, VT)
    A("s_mul_i32 s31, s30, 3200")
    A("s_add_u32 s31, s31, %d", L_YT)
    A("v_add_u32 v%d, s31, v%d", VT, VT)
    A("s_waitcnt lgkmcnt(8)")
    A("ds_write_b128 v%d, %s", VT, RR(YR, 4))
    A("ds_write_b128 v%d, %s offset:1280", VT, RR(YR + 4, 4))
    A("s_mov_b32 exec_hi, 0")
    A("ds_write_b128 v%d, %s offset:2560", VT, RR(YR + 8, 4))
    A("s_mov_b32 exec_hi, -1")
    A("s_mul_i32 s31, s30, 15360")
    A("s_add_u32 s31, s31, %d", L_RED)
    A("v_add_u32 v%d, s31, v%d", T0, VW)
    A("v_lshrrev_b32 v%d, 2, v0", T1)
    A("v_mul_u32_u24 v%d, 160, v%d", T1, T1)
    A("v_and_b32 v%d, 3, v0", VT)
    A("v_lshl_add_u32 v%d, v%d, 3, v%d", T1, VT, T1)
    A("s_lshl_b32 s31, s30, 5")
    A("s_add_u32 s31, s31, %d", L_YT)
    A("v_add_u32 v%d, s31, v%d", T1, T1)
    srd(A, 48, 24, X_BYTES)
    A("s_waitcnt lgkmcnt(0)")
    A("s_barrier")
    P = 184
    for nt in range(5):
        A("ds_read_b64_tr_b16 %s, v%d offset:%d", RR(YR + 2*nt, 2), T1, nt*16*160)
    for nt in range(5):
        for i in range(3):
            if nt*3 + i == 9: A("s_waitcnt lgkmcnt(4)")
            A("ds_read_b128 %s, v%d offset:%d", RR(P + (nt*3 + i)*4, 4), T0, i*5120 + nt*1024)
    YF = 36
    for k in range(10):
        A("v_lshlrev_b32 v%d, 16, v%d", YF + 2*k, YR + k)
        A("v_and_b32 v%d, 0xffff0000, v%d", YF + 2*k + 1, YR + k)
    for k in range(10):
        A("v_pk_fma_f32 %s, %s, %s, %s", RR(XF + 2*k, 2), RR(XN + 2*k, 2), RR(YF + 2*k, 2), RR(XF + 2*k, 2))
    for k in range(10):
        A("v_pk_add_f32 %s, %s, %s", RR(XF + 2*k, 2), RR(XF + 2*k, 2), RR(GACC + 2*k, 2))
    A("s_waitcnt lgkmcnt(0)")
    for i in range(3):
        for nt in range(5):
            for h in range(2):
                A("v_pk_add_f32 %s, %s, %s", RR(XF + 4*nt + 2*h, 2), RR(XF + 4*nt + 2*h, 2), RR(P + (nt*3 + i)*4 + 2*h, 2))
    for k in range(10):
        A("v_cvt_pk_bf16_f32 v%d, v%d, v%d", XR + k, XF + 2*k, XF + 2*k + 1)
    for nt in range(5):
        A("ds_write_b64 v%d, %s offset:%d", VR, RR(XR + 2*nt, 2), 32*nt)
    A("v_add_u32 v%d, s65, v%d", T0, VW)
    A("s_waitcnt lgkmcnt(0)")
    for i in range(3):
        A("ds_read_b128 %s, v%d offset:%d", RR(P + 4*i, 4), T0, 1024*i)
    for i in range(3):
        A("s_waitcnt lgkmcnt(%d)", 2 - i)
        A("buffer_store_dwordx4 %s, v%d, s[48:51], s63 offen", RR(P + 4*i, 4), VX + i)
```

```python
import sys
from asmlib import *
import k1, k2
NAME = "parallel_sum__ssm_conv_h3__swiglu_ffn__prompt"
def build(path):
    ref = open("cdna_kernels/%s.s.ref" % NAME).read().split("\n")
    hdr = [l for l in ref if l.startswith(";") and "@launch" not in l and "Override launch" not in l and "grid=ceil" not in l]
    A = Asm()
    for l in hdr: A.raw(l)
    A.raw("; @launch kernel=k1_kernel grid=(256,1,1) block=(512,1,1) lds=%d" % k1.K1_LDS)
    A.raw("; @launch kernel=k2_kernel grid=(256,1,1) block=(256,1,1) lds=%d" % k2.K2_LDS)
    A.raw('.amdgcn_target "amdgcn-amd-amdhsa--gfx950"')
    A.raw(".text")
    A.raw(".globl k1_kernel\n.p2align 8\n.type k1_kernel,@function")
    k1.gen_k1(A)
    A.raw(".globl k2_kernel\n.p2align 8\n.type k2_kernel,@function")
    k2.gen_k2(A)
    A.raw('.section .rodata,"a"\n.p2align 6')
    A.raw(kd("k1_kernel", 256, 256))
    A.raw(".p2align 6")
    A.raw(kd("k2_kernel", 512, 256))
    open(path, "w").write(A.text())
if __name__ == "__main__":
    build(sys.argv[1] if len(sys.argv) > 1 else "cdna_kernels/%s.s" % NAME)
```

```python
import struct

def f2h(x):
    return "0x%08x" % struct.unpack("<I", struct.pack("<f", x))[0]

class Asm:
    def __init__(self):
        self.L = []
    def __call__(self, s, *a):
        if a: s = s % a
        self.L.append("    " + s)
    def label(self, s):
        self.L.append(s + ":")
    def c(self, s):
        self.L.append("    ; " + s)
    def raw(self, s):
        self.L.append(s)
    def text(self):
        return "\n".join(self.L) + "\n"

def R(i):
    return "v%d" % i if i < 256 else "a%d" % (i - 256)

def RR(i, n):
    if n == 1: return R(i)
    if i < 256:
        assert i + n <= 256, (i, n)
        return "v[%d:%d]" % (i, i + n - 1)
    return "a[%d:%d]" % (i - 256, i - 256 + n - 1)

def S(i, n=1):
    return "s%d" % i if n == 1 else "s[%d:%d]" % (i, i + n - 1)

def srd(A, d, lo, nbytes, add=None):
    if add is None:
        A("s_mov_b32 s%d, s%d", d, lo)
        A("s_mov_b32 s%d, s%d", d + 1, lo + 1)
    else:
        A("s_add_u32 s%d, s%d, %s", d, lo, add)
        A("s_addc_u32 s%d, s%d, 0", d + 1, lo + 1)
    A("s_mov_b32 s%d, %s", d + 2, nbytes if isinstance(nbytes, str) else hex(nbytes))
    A("s_mov_b32 s%d, 0x20000", d + 3)

def kd(name, vgpr, accum, sgpr=100):
    return """.amdhsa_kernel %s
  .amdhsa_next_free_vgpr %d
  .amdhsa_next_free_sgpr %d
  .amdhsa_accum_offset %d
  .amdhsa_group_segment_fixed_size 0
  .amdhsa_kernarg_size 104
  .amdhsa_user_sgpr_count 2
  .amdhsa_user_sgpr_kernarg_segment_ptr 1
  .amdhsa_system_sgpr_workgroup_id_x 1
  .amdhsa_float_denorm_mode_32 3
.end_amdhsa_kernel
""" % (name, vgpr, sgpr, accum)

import os
DIAG = os.environ.get("DIAG", "0") == "1"
WS_DBG = 0x1100000
def stamp(A, i):
    if DIAG:
        if i == 0:
            A("s_memrealtime s[78:79]")
        A("s_memtime s[%d:%d]", 80 + 2*i, 81 + 2*i)
def stamp_dump(A, kern, wave_sreg, nst, nw=8):
    if not DIAG: return
    A("s_waitcnt vmcnt(0) lgkmcnt(0)")
    A("s_memtime s[%d:%d]", 80 + 2*nst, 81 + 2*nst)
    A("s_memrealtime s[76:77]")
    A("s_waitcnt lgkmcnt(0)")
    A("s_add_u32 s96, s28, %s", hex(WS_DBG + kern*0x40000))
    A("s_addc_u32 s97, s29, 0")
    A("s_mov_b32 s98, 0x40000")
    A("s_mov_b32 s99, 0x20000")
    A("s_lshl_b32 s75, s2, 3")
    A("s_add_u32 s75, s75, s%d", wave_sreg)
    A("s_lshl_b32 s75, s75, 6")
    A("v_mov_b32 v250, s75")
    A("v_mov_b32 v251, s78")
    A("buffer_store_dword v251, v250, s[96:99], 0 offen")
    A("v_mov_b32 v252, s76")
    A("buffer_store_dword v252, v250, s[96:99], 0 offen offset:4")
    for i in range(1, nst + 1):
        A("s_sub_u32 s74, s%d, s80", 80 + 2*i)
        A("v_mov_b32 v%d, s74", 240 + i)
        A("buffer_store_dword v%d, v250, s[96:99], 0 offen offset:%d", 240 + i, 4 + 4*i)
    A("s_waitcnt vmcnt(0)")
```

```python
from asmlib import *
import os
P = dict(ROT1=5, ROT2=7, ROTM=1, XROT=1, W9=10, WE=16, PUB=40, P1ONLY=0, PERCH=0, GDELAY=0, XMAP=0, ST2=0, WMODE=0, NH0=10)
for k in list(P):
    if k in os.environ:
        P[k] = type(P[k])(os.environ[k])
NS = 14
KN = "parallel_sum__ssm_conv_h3__swiglu_ffn__prompt_kernel"
WS_HF = 0
HF_BYTES = 32*54*4*1024
WS_WD = 0x700000
WD_BYTES = 54*40*1024
WS_UT = 0xA00000
UT_BYTES = 640*4096
WS_YT = 0xD00000
YT_BYTES = 640*4096
WS_ST = 0x1000000
ST_BYTES = 2048*4
FL_H = 0x1010000
FL_Y = FL_H + 1024*128
FL_W = FL_Y + 1280*128
FL_S = FL_W + 540*128
FL_U = FL_S + 256*128
WS_END = FL_U + 40*128
X_BYTES = 2048*1280
W_BYTES = 640*3456
LOG2E = 1.4426950408889634
STAGE = 49152
L_CS = 3*STAGE
L_EX = 3*STAGE
CPY = 4160
CONV_H = 4*CPY
CONV_SZ = CONV_H + 4608
L_CA = 2*STAGE
L_CB = 16384
L_RED = 0
L_XT = 61440
L_YT = L_XT + 4*3072
LDS_BYTES = 163840
sW = 30; sRB = 32; sCT = 33
SX = 40; SWT = 44; SWS = 52; SDB = 56; SA = 60; SB = 64
sXL = 48; sK0 = 49; sD = 50; sSP = 51
sR2 = 68; sC2 = 69; sCH = 70; sCL = 71
sWP = 72; sWP2 = 73; sKW = 74; sHP = 75; sKH = 76; sXO = 77
sN = 16
sHF = 6
sD2 = 7; sHW = 8; sYF = 9; sNY = 10; sCLn = 11
ACC = 16; FR = [144, 168]
XA = 208; WA = 212; CA = 214; VDX = 220; VDW = 224; CSA = 228; VST = 192; CF = 232
VSTA = 193; VPL = 196; VNO = 198; VPA = 195
URAW = 232
VNF = 244
VH = 1; VW = 5; VX = 6; VSTAT = 9; VA = 10; VB = 11; VY0 = 12; VY2 = 13; T0 = 14; T1 = 15
CACC = 16; CFR = [48, 112]
GACC = 16; RING = 96
def wslot(j): return 256 + 20*j if j < 12 else 176 + 20*(j - 12)
def gacc(nt, i): return GACC + (i*5 + nt)*4
def wfr(b, a): return FR[b] + 4*a
def xfr(b, tt): return FR[b] + 16 + 4*tt
def acc(a, tt): return ACC + (a*2 + tt)*16
WS = "s[%d:%d]" % (SWS, SWS + 3)

WS_DBG2 = 0x1100000
if DIAG: WS_END = WS_DBG2 + 0x40000
def stamp(A, i):
    if DIAG:
        if i == 0: A("s_memrealtime s[100:101]")
        A("s_memtime s[%d:%d]", 80 + 2*i, 81 + 2*i)
def stamp_dump(A, nst=10):
    if not DIAG: return
    A("s_waitcnt vmcnt(0) lgkmcnt(0)")
    A("s_memtime s[34:35]")
    A("s_memrealtime s[36:37]")
    A("s_waitcnt lgkmcnt(0)")
    A("s_lshl_b32 s31, s2, 3")
    A("s_add_u32 s31, s31, s%d", sW)
    A("s_lshl_b32 s31, s31, 6")
    A("s_add_u32 s31, s31, %s", hex(WS_DBG2))
    A("v_mov_b32 v250, s31")
    A("v_mov_b32 v230, s100"); A("v_mov_b32 v231, s36")
    for i in range(1, nst + 1):
        A("s_sub_u32 s31, s%d, s80", 80 + 2*i if i < nst else 34)
        A("v_mov_b32 v%d, s31", 231 + i)
    A("v_mov_b32 v%d, s%d", 232 + nst, sSP)
    for k in range(nst + 3):
        A("buffer_store_dword v%d, v250, %s, 0 offen offset:%d", 230 + k, WS, 4*k)
    A("s_waitcnt vmcnt(0)")

def interleave(A, main, fill, start=0, end=None):
    n = len(main)
    if end is None: end = n
    k = 0; m = len(fill)
    for i in range(n):
        A(main[i])
        if i >= start:
            while k < m and (k * (end - start) <= (i - start) * m or i >= end - 1):
                for x in fill[k]: A(x)
                k += 1
    assert k == m

def emit(A, groups):
    for g in groups:
        for x in g: A(x)

def merge(a, b):
    out = []; k = 0
    for i, x in enumerate(a):
        out.append(x)
        while k < len(b) and (k + 1) * len(a) <= (i + 1) * len(b) + len(a)//2:
            out.append(b[k]); k += 1
    return out + b[k:]

def wloads(j):
    b = wslot(j)
    out = [["buffer_load_dwordx4 %s, v%d, %s, s%d offen offset:%d sc1" % (RR(b + 4*t, 4), VW, WS, sWP if t < 4 else sWP2, (t & 3)*1024)] for t in range(5)]
    if P["WMODE"] == 1: out = [[x[0].replace(" sc1", "")] for x in out]
    if P["WMODE"] == 2: out = [[x[0].replace(RR(b + 4*t, 4), "a[240:243]")] for t, x in enumerate(out)]
    if P["WMODE"] == 3: out = [[x[0].replace("v%d, %s" % (VW, WS), "v255, %s" % WS)] for t, x in enumerate(out)]
    if P["WMODE"] == 4: out = [[x[0].replace("s%d offen" % sWP, "0 offen").replace("s%d offen" % sWP2, "0 offen")] for t, x in enumerate(out)]
    out[4] += ["s_add_u32 s%d, s%d, 1" % (sKW, sKW),
               "s_cmp_eq_u32 s%d, 54" % sKW,
               "s_cselect_b32 s31, %d, s39" % (40960 - 54*40960),
               "s_cselect_b32 s%d, 0, s%d" % (sKW, sKW),
               "s_add_u32 s%d, s%d, s31" % (sWP, sWP),
               "s_add_u32 s%d, s%d, s31" % (sWP2, sWP2)]
    return out
WL = []
for _j in range(NS - 1): WL += wloads(_j)

def w_setup():
    return ["s_mov_b32 s39, 40960",
            "s_mov_b32 s%d, s%d" % (sKW, sK0),
            "s_mul_i32 s%d, s%d, 40960" % (sWP, sK0),
            "s_mul_i32 s31, s%d, 5120" % sC2,
            "s_add_u32 s%d, s%d, s31" % (sWP, sWP),
            "s_add_u32 s%d, s%d, %s" % (sWP, sWP, hex(WS_WD)),
            "s_add_u32 s%d, s%d, 4096" % (sWP2, sWP)]

NONCE = "buffer_load_dwordx2 v[%d:%d], v%d, s[%d:%d], 0 offen sc1" % (VNO, VNO + 1, T1, SDB, SDB + 3)
POLL = "buffer_load_dwordx2 v[%d:%d], v%d, %s, 0 offen sc1" % (VPL, VPL + 1, VPA, WS)

def poll_addr(A, chreg, rb64):
    A("v_lshrrev_b32 v%d, 1, v0", VPA)
    A("v_add_u32 v%d, s%d, v%d", VPA, sK0, VPA)
    A("v_cmp_le_u32 vcc, 54, v%d", VPA)
    A("v_add_u32 v%d, -54, v%d", T0, VPA)
    A("v_and_b32 v%d, 1, v0", VPL)
    A("v_cndmask_b32 v%d, v%d, v%d, vcc", VPA, VPA, T0)
    A("s_mul_i32 s31, s%d, 5", sC2)
    A("s_lshr_b32 s31, s31, 2")
    A("v_mad_u32_u24 v%d, v%d, 10, s31", VPA, VPA)
    A("v_add_u32 v%d, v%d, v%d", VPA, VPA, VPL)
    A("s_lshl_b32 s31, s%d, 2", sR2)
    A("s_add_u32 s31, s31, s%d", sW)
    A("s_lshl_b32 s31, s31, 1")
    A("s_add_u32 s31, s31, 540")
    A("v_add_u32 v%d, s31, v%d", T0, VPL)
    A("v_cmp_gt_u32 vcc, 28, v0")
    A("s_nop 1")
    A("v_cndmask_b32 v%d, v%d, v%d, vcc", VPA, T0, VPA)
    if rb64 is not None:
        A("s_lshl_b32 s31, s%d, 3", rb64)
        A("s_add_u32 s31, s31, %d", 540 - 28)
        A("v_add_u32 v%d, s31, v0", T0)
        A("v_add_u32 v%d, -28, v0", VPL + 1)
        A("v_cmp_gt_u32 vcc, 8, v%d", VPL + 1)
        A("s_lshr_b32 s31, s%d, 6", chreg)
        A("s_add_u32 s31, s31, %d", 540 + 256)
        A("v_cndmask_b32 v%d, v%d, v%d, vcc", VPA, VPA, T0)
        A("v_and_b32 v%d, 3, v0", T0)
        A("v_mad_u32_u24 v%d, v%d, 10, s31", T0, T0)
        A("v_cmp_gt_u32 vcc, 38, v0")
        A("s_nop 1")
        A("v_cndmask_b32 v%d, v%d, v%d, vcc", VPA, T0, VPA)
    A("v_lshlrev_b32 v%d, 7, v%d", VPA, VPA)
    A("v_add_u32 v%d, %s, v%d", VPA, hex(FL_W), VPA)

def nonce_get(A, tag):
    A.label("nc_" + tag)
    A("v_readfirstlane_b32 s%d, v%d", sN, VNO)
    A("v_readfirstlane_b32 s%d, v%d", sN + 1, VNO + 1)
    A("s_add_u32 s%d, s%d, 1", sSP, sSP)
    A("s_cmp_lg_u32 s%d, 0", sN)
    A("s_cbranch_scc1 nk_%s", tag)
    A("s_cmp_gt_u32 s%d, 0x80000", sSP)
    A("s_cbranch_scc1 nk_%s", tag)
    A("v_mov_b32 v%d, 0", T1)
    A(NONCE)
    A("s_waitcnt vmcnt(0)")
    A("s_branch nc_%s", tag)
    A.label("nk_" + tag)

def stats_calc(A, XT, R, ones):
    for j in range(4): A("v_mov_b32 v%d, 0", R + j)
    for i in range(40):
        A("v_dot2c_f32_bf16 v%d, %s, v%d", R + (i & 1), ones, XT + i)
        A("v_dot2c_f32_bf16 v%d, v%d, v%d", R + 2 + (i & 1), XT + i, XT + i)
    A("s_nop 2")
    a, b = R, R + 2
    A("v_add_f32 v%d, v%d, v%d", a, a, a + 1)
    A("v_add_f32 v%d, v%d, v%d", b, b, b + 1)
    for mode in ("quad_perm:[1,0,3,2]", "quad_perm:[2,3,0,1]", "row_half_mirror"):
        A("s_nop 0")
        A("v_add_f32_dpp v%d, v%d, v%d %s row_mask:0xf bank_mask:0xf", a, a, a, mode)
        A("v_add_f32_dpp v%d, v%d, v%d %s row_mask:0xf bank_mask:0xf", b, b, b, mode)
    A("v_mul_f32 v%d, %s, v%d", a, f2h(1.0/640), a)
    A("v_mul_f32 v%d, %s, v%d", b, f2h(1.0/640), b)
    A("v_fma_f32 v%d, -v%d, v%d, v%d", b, a, a, b)
    A("v_max_f32 v%d, 0, v%d", b, b)
    A("v_cvt_pk_bf16_f32 v%d, v%d, v%d", b, b, b)
    A("v_lshlrev_b32 v%d, 16, v%d", b, b)
    A("v_add_f32 v%d, %s, v%d", b, f2h(1e-5), b)
    A("v_cvt_pk_bf16_f32 v%d, v%d, v%d", b, b, b)
    A("v_lshlrev_b32 v%d, 16, v%d", b, b)
    A("v_sqrt_f32 v%d, v%d", b, b)
    A("s_nop 0")
    A("v_cvt_pk_bf16_f32 v%d, v%d, v%d", a, a, b)

def poll_check(A, tag, with_nonce):
    A.label("chk_" + tag)
    if with_nonce:
        A("v_readfirstlane_b32 s%d, v%d", sN, VNO)
        A("v_readfirstlane_b32 s%d, v%d", sN + 1, VNO + 1)
        A("s_add_u32 s%d, s%d, 1", sSP, sSP)
        A("s_cmp_eq_u32 s%d, 0", sN)
        A("s_cbranch_scc1 re_%s", tag)
    else:
        A("s_add_u32 s%d, s%d, 1", sSP, sSP)
    A("v_cmp_ne_u64 vcc, s[%d:%d], v[%d:%d]", sN, sN + 1, VPL, VPL + 1)
    A("s_nop 3")
    A("s_cbranch_vccz ok_%s", tag)
    A.label("re_" + tag)
    A("s_cmp_gt_u32 s%d, 0x80000", sSP)
    A("s_cbranch_scc1 ok_%s", tag)
    A("s_sleep 8")
    if with_nonce:
        A("v_mov_b32 v%d, 0", T1)
        A(NONCE)
    A(POLL)
    A("s_waitcnt vmcnt(0)")
    A("s_branch chk_%s", tag)
    A.label("ok_" + tag)

def gen(A):
    A.label(KN)
    A("s_cmp_ge_u32 s2, 256")
    A("s_cbranch_scc1 L_end")
    stamp(A, 0)
    A("s_load_dwordx16 s[4:19], s[0:1], 0")
    A("s_load_dwordx8 s[20:27], s[0:1], 64")
    A("s_load_dwordx2 s[28:29], s[0:1], 96")
    A("s_getpc_b64 s[72:73]")
    A.label("L_pc")
    A("v_lshlrev_b32 v%d, 7, v0", T0)
    A("s_mov_b32 s74, L_codeend-L_pc")
    A("s_mov_b32 s75, 0x20000")
    A("s_mov_b32 s31, 0x8000")
    A("buffer_load_dword v246, v%d, s[72:75], 0 offen", T0)
    A("v_add_u32 v%d, s31, v%d", T0, T0)
    A("buffer_load_dword v247, v%d, s[72:75], 0 offen", T0)
    A("v_lshrrev_b32 v1, 6, v0")
    A("v_and_b32 v0, 63, v0")
    A("s_and_b32 s31, s2, 7")
    A("v_readfirstlane_b32 s%d, v1", sW)
    A("s_lshr_b32 s34, s2, 3")
    if P["XMAP"] == 0:
        A("s_lshl_b32 s%d, s31, 2", sR2)
        A("s_and_b32 s35, s34, 3")
        A("s_add_u32 s%d, s%d, s35", sR2, sR2)
        A("s_lshr_b32 s%d, s34, 2", sC2)
    else:
        A("s_lshr_b32 s%d, s31, 1", sR2)
        A("s_lshl_b32 s%d, s%d, 3", sR2, sR2)
        A("s_and_b32 s35, s34, 7")
        A("s_add_u32 s%d, s%d, s35", sR2, sR2)
        A("s_and_b32 s%d, s31, 1", sC2)
        A("s_lshl_b32 s%d, s%d, 2", sC2, sC2)
        A("s_lshr_b32 s35, s34, 3")
        A("s_add_u32 s%d, s%d, s35", sC2, sC2)
    A("s_mul_i32 s35, s%d, 14", sW)
    A("s_cmp_eq_u32 s%d, 3", sW)
    A("s_cselect_b32 s35, 41, s35")
    A("s_add_u32 s36, s%d, s34", sC2)
    A("s_and_b32 s36, s36, 1")
    A("s_mul_i32 s36, s36, %d", P["ROT2"])
    A("s_add_u32 s%d, s35, s36", sK0)
    A("s_mov_b32 s%d, 0", sSP)
    A("v_lshlrev_b32 v%d, 4, v0", VW)
    if P["WMODE"] == 3: A("v_bfrev_b32 v255, 1")
    A("s_lshr_b32 s35, s31, 2")
    A("s_and_b32 s36, s31, 3")
    A("s_cmp_eq_u32 s36, 3")
    A("s_cselect_b32 s37, 8, 4")
    A("s_cmp_lt_u32 s34, s37")
    A("s_cbranch_scc1 L_helper")
    nw = gen_g(A)
    gen_conv(A, "F", WL[nw:], False, True)
    gen_gemm2(A)
    gen_helper(A, nw)
    A.label("L_end")
    A("s_endpgm")
    A.label("L_codeend")

def reads_for(s, b):
    out = []
    for a in range(4):
        mat, ft = a >> 1, a & 1
        for e2 in range(2):
            out.append("ds_read_b64_tr_b16 %s, v%d offset:%d" % (RR(wfr(b, a) + 2*e2, 2), WA + ft, mat*8192 + s*2048 + e2*512))
    xs = ["ds_read_b128 %s, v%d offset:%d" % (RR(xfr(b, tt), 4), XA + s, tt*4096) for tt in range(2)]
    return [xs[0], out[0], out[1], xs[1]] + out[2:]

def mfma_list(b):
    out = []
    for a in range(4):
        for tt in range(2):
            d = RR(acc(a, tt), 16)
            out.append("v_mfma_f32_32x32x16_bf16 %s, %s, %s, %s" % (d, RR(wfr(b, a), 4), RR(xfr(b, tt), 4), d))
    return out

def dma_groups():
    g = []
    for k in range(4):
        x = []
        if k == 0: x += ["s_mov_b32 m0, s63", "s_add_u32 s66, s60, 40960"]
        x.append("buffer_load_dwordx4 v%d, s[%d:%d], s61 offen offset:%d lds" % (VDW + k, SWT, SWT + 3, 1024*k))
        g.append(x)
    for h in range(2):
        for k in range(4):
            x = []
            if k == 0: x += (["s_mov_b32 m0, s62", "s_add_u32 s64, s64, 1"] if h == 0 else ["s_add_u32 m0, s62, 4096", "s_cmp_eq_u32 s64, 10"])
            x.append("buffer_load_dwordx4 v%d, s[%d:%d], s%d offen offset:%d lds" % (VDX + k, SX, SX + 3, 60 if h == 0 else 66, 1024*k))
            g.append(x)
    g[8] = g[8][:2] + ["s_cselect_b32 s76, %d, s38" % (64*3456 - 640*3456), "s_cselect_b32 s67, %d, s37" % (128 - 1280), "s_cselect_b32 s64, 0, s64"] + g[8][2:]
    g[9] += ["s_add_u32 s61, s61, s76", "s_add_u32 s60, s60, s67"]
    g[10] += ["s_cmp_eq_u32 s65, 2", "s_cselect_b32 s67, %d, s36" % (-2*STAGE), "s_cselect_b32 s65, -1, s65"]
    g[11] += ["s_add_u32 s65, s65, 1", "s_add_u32 s62, s62, s67", "s_add_u32 s63, s63, s67"]
    return g

def gen_g(A):
    A.c("================ G path ================")
    for _ in range(P["GDELAY"]): A("s_sleep 16")
    A("s_sub_u32 s34, s34, s37")
    A("s_and_b32 s%d, s34, 3", sRB)
    A("s_lshr_b32 s%d, s34, 2", sCT)
    A("s_add_u32 s64, s%d, s%d", sRB, sCT)
    A("s_and_b32 s64, s64, %d", P["ROTM"])
    A("s_mul_i32 s64, s64, %d", P["ROT1"])
    if P["XROT"]:
        A("s_add_u32 s64, s64, s36")
        A("s_lshl_b32 s38, s35, 1")
        A("s_add_u32 s64, s64, s38")
    A("s_cmp_ge_u32 s64, 10")
    A("s_cselect_b32 s38, 10, 0")
    A("s_sub_u32 s64, s64, s38")
    A("s_mul_i32 s38, s35, 108")
    A("s_mul_i32 s39, s36, 28")
    A("s_add_u32 s38, s38, s39")
    A("s_add_u32 s38, s38, s34")
    A("s_and_b32 s39, s38, 1")
    A("s_lshl_b32 s39, s39, 2")
    A("s_add_u32 s39, s39, s%d", sW)
    A("s_lshr_b32 s31, s38, 1")
    A("s_mul_i32 s77, s31, 5")
    A("s_add_u32 s77, s77, s39")
    A("s_cmp_gt_u32 s39, 3")
    A("s_subb_u32 s77, s77, 0")
    A("s_lshr_b32 s76, 0xc8, s39")
    A("s_and_b32 s76, s76, 1")
    A("s_cbranch_scc0 G_uw")
    A("s_mul_i32 s77, s35, 54")
    A("s_sub_u32 s77, s31, s77")
    A("s_mul_i32 s77, s77, 3")
    A("s_max_u32 s39, s39, 5")
    A("s_add_u32 s77, s77, s39")
    A("s_sub_u32 s77, s77, 5")
    A("s_cmp_ge_u32 s77, 128")
    A("s_cselect_b32 s76, 2, 1")
    A("s_lshl_b32 s39, s35, 7")
    A("s_add_u32 s77, s77, s39")
    A.label("G_uw")
    A("s_lshl_b32 s%d, s38, 1", sCH)
    A("s_lshr_b32 s38, s%d, 1", sW)
    A("s_add_u32 s%d, s%d, s38", sCH, sCH)
    A("s_lshl_b32 s35, s35, 2")
    A("s_add_u32 s%d, s%d, s35", sRB, sRB)
    A("s_mul_i32 s36, s36, 7")
    A("s_add_u32 s%d, s%d, s36", sCT, sCT)
    A("v_lshrrev_b32 v2, 3, v0")
    A("v_and_b32 v3, 7, v0")
    A("v_lshrrev_b32 v4, 4, v0")
    A("v_xor_b32 v6, v3, v4")
    A("v_lshlrev_b32 v6, 4, v6")
    A("v_mul_u32_u24 v7, 1280, v2")
    A("v_add_u32 v%d, v7, v6", VDX)
    A("v_xor_b32 v6, 64, v6")
    A("v_add_u32 v7, v7, v6")
    A("v_add_u32 v%d, %d, v7", VDX + 1, 9216)
    A("v_add_u32 v%d, %d, v%d", VDX + 2, 2*9216, VDX)
    A("v_add_u32 v%d, %d, v7", VDX + 3, 3*9216)
    A("v_and_b32 v4, 1, v4")
    A("v_lshlrev_b32 v4, 2, v4")
    A("v_xor_b32 v6, v3, v4")
    A("v_mul_u32_u24 v7, 3456, v2")
    A("v_lshl_add_u32 v%d, v6, 4, v7", VDW)
    for k in range(1, 4):
        A("v_add_u32 v%d, %d, v%d", VDW + k, k*(8*3456 - 1024), VDW)
    A("s_lshl_b32 s31, s%d, 2", sRB)
    A("s_add_u32 s34, s31, s%d", sW)
    A("s_mul_i32 s60, s34, %d", 64*1280)
    A("s_lshl_b32 s31, s64, 7")
    A("s_add_u32 s60, s60, s31")
    A("s_and_b32 s31, s%d, 1", sW)
    A("s_lshl_b32 s31, s31, 5")
    A("s_lshl_b32 s35, s64, 6")
    A("s_add_u32 s31, s31, s35")
    A("s_mul_i32 s61, s31, 3456")
    A("s_lshl_b32 s31, s%d, 7", sCT)
    A("s_add_u32 s61, s61, s31")
    A("s_lshl_b32 s62, s%d, 13", sW)
    A("s_add_u32 s62, s62, %d", STAGE)
    A("s_lshl_b32 s63, s%d, 12", sW)
    A("s_add_u32 s63, s63, %d", STAGE + 32768)
    A("s_mov_b32 s65, 1")
    A("s_mov_b32 s36, %d", STAGE)
    A("s_mov_b32 s37, 128")
    A("s_mov_b32 s38, %d", 64*3456)
    A("s_mov_b32 s%d, %s", SWT + 2, hex(W_BYTES))
    A("s_mov_b32 s%d, 0x20000", SWT + 3)
    A("s_mov_b32 s%d, %s", SX + 2, hex(X_BYTES))
    A("s_mov_b32 s%d, 0x20000", SX + 3)
    A("s_cmp_ge_u32 s%d, 2", sW)
    A("s_waitcnt lgkmcnt(0)")
    A("s_cselect_b32 s%d, s20, s18", SWT)
    A("s_cselect_b32 s%d, s21, s19", SWT + 1)
    A("s_mov_b32 s%d, s4", SX)
    A("s_mov_b32 s%d, s5", SX + 1)
    stamp(A, 1)
    dg = dma_groups()
    A("v_mul_u32_u24 v9, 1280, v2")
    A("v_lshl_add_u32 v9, v3, 4, v9")
    A("s_cmp_eq_u32 s76, 1")
    A("s_cbranch_scc1 G_ul1")
    A("s_cmp_eq_u32 s76, 2")
    A("s_cbranch_scc1 G_ul2")
    srd(A, 72, 22, W_BYTES)
    A("s_mul_i32 s31, s77, 6554")
    A("s_lshr_b32 s31, s31, 16")
    A("s_mul_i32 s35, s31, %d", 32*1280 - 1280)
    A("s_lshl_b32 s39, s77, 7")
    A("s_add_u32 s35, s35, s39")
    A("s_lshl_b32 s39, s%d, 12", sW)
    for i in range(4):
        A("s_add_u32 m0, s39, %d", 1024*i)
        A("s_add_u32 s31, s35, %d", 8*1280*i)
        A("buffer_load_dwordx4 v9, s[72:75], s31 offen lds")
    A("s_branch G_ul2")
    A.label("G_ul1")
    A("s_mul_i32 s31, s77, %d", 8*1280)
    for i in range(10):
        A("buffer_load_dwordx4 %s, v9, s[%d:%d], s31 offen offset:%d", RR(144 + 4*i, 4), SX, SX + 3, 128*i)
    A.label("G_ul2")
    emit(A, dg[:6])
    srd(A, SWS, 28, WS_END)
    A("s_mul_i32 s31, s34, 54")
    A("s_lshl_b32 s35, s%d, 1", sCT)
    A("s_add_u32 s31, s31, s35")
    A("s_lshl_b32 s78, s31, 12")
    A("s_add_u32 s79, s78, 4096")
    A("s_lshl_b32 s3, s34, 8")
    A("s_add_u32 s3, s3, %s", hex(WS_ST))
    A("s_lshl_b32 s31, s34, 5")
    A("s_add_u32 s31, s31, s%d", sCT)
    A("s_lshl_b32 s31, s31, 7")
    A("s_add_u32 s%d, s31, %s", sHF, hex(FL_H))
    A("s_and_b32 s%d, s%d, 1", sHW, sW)
    A("s_lshr_b32 s31, s%d, 1", sW)
    A("s_mul_i32 s%d, s31, %d", sCL, CONV_SZ)
    A("s_add_u32 s%d, s%d, %d", sCL, sCL, L_CA)
    A("s_mov_b32 s%d, s%d", sYF, sCH)
    A("s_mov_b32 s%d, 1", sNY)
    A("v_and_b32 v1, 31, v0")
    A("v_lshrrev_b32 v2, 5, v0")
    A("v_bfe_u32 v3, v0, 1, 3")
    A("v_xor_b32 v3, v3, v2")
    A("s_lshl_b32 s31, s%d, 13", sW)
    A("s_add_u32 s31, s31, %d", STAGE)
    A("v_lshlrev_b32 v4, 7, v1")
    A("v_add_u32 v4, s31, v4")
    A("v_lshl_add_u32 v%d, v3, 4, v4", XA)
    for s in range(1, 4):
        A("v_xor_b32 v%d, %d, v%d", XA + s, 32*s, XA)
    A("v_lshlrev_b32 v%d, 10, v2", WA)
    A("v_bfe_u32 v3, v0, 2, 2")
    A("v_lshl_add_u32 v%d, v3, 7, v%d", WA, WA)
    A("v_lshrrev_b32 v3, 1, v3")
    A("v_lshl_add_u32 v%d, v3, 6, v%d", WA, WA)
    A("v_bfe_u32 v3, v0, 4, 1")
    A("v_lshl_add_u32 v%d, v3, 5, v%d", WA, WA)
    A("v_and_b32 v4, 3, v0")
    A("v_lshl_add_u32 v%d, v4, 3, v%d", WA, WA)
    A("v_add_u32 v%d, %d, v%d", WA, STAGE + 32768, WA)
    A("v_xor_b32 v%d, 64, v%d", WA + 1, WA)
    A("s_lshl_b32 s31, s%d, 6", sHW)
    A("v_xor_b32 v%d, s31, v%d", CA, WA)
    A("s_lshr_b32 s31, s%d, 1", sW)
    A("s_lshl_b32 s31, s31, 13")
    A("v_add_u32 v%d, s31, v%d", CA, CA)
    A("v_lshlrev_b32 v%d, 10, v3", VST)
    A("v_lshl_add_u32 v%d, v2, 8, v%d", VST, VST)
    A("v_and_b32 v4, 15, v0")
    A("v_lshl_add_u32 v%d, v4, 4, v%d", VST, VST)
    A("v_lshlrev_b32 v6, 4, v2")
    A("v_add_u32 v6, %d, v6", L_CS)
    A("v_lshlrev_b32 v7, 2, v1")
    A("s_lshl_b32 s31, s%d, 7", sW)
    A("s_add_u32 s31, s31, %d", L_CS)
    A("v_add_u32 v8, s31, v7")
    poll_addr(A, sCH, 34)
    for r in range(ACC, ACC + 128): A("v_mov_b32 v%d, 0", r)
    for r in range(CSA, CSA + 4): A("v_mov_b32 v%d, 0", r)
    A("v_mov_b32 v%d, 0", T1)
    A("s_mov_b32 s34, 0")
    A("s_mov_b32 s35, 1")
    A("s_mov_b32 s39, 0x3f803f80")
    srd(A, SDB, 26, 256)
    A("v_lshlrev_b32 v252, 25, v0")
    A("s_mov_b32 s%d, 0x7f000000", sD2)
    A("s_cmp_eq_u32 s76, 2")
    A("s_cbranch_scc1 G_up2")
    A("s_cmp_eq_u32 s76, 1")
    A("s_waitcnt vmcnt(6)")
    A("s_cbranch_scc1 G_up1")
    A("v_lshrrev_b32 v10, 5, v0")
    A("v_lshlrev_b32 v9, 11, v10")
    A("v_bfe_u32 v10, v0, 2, 3")
    A("v_lshl_add_u32 v9, v10, 7, v9")
    A("v_and_b32 v10, 3, v0")
    A("v_lshl_add_u32 v9, v10, 3, v9")
    A("s_lshl_b32 s31, s%d, 12", sW)
    A("v_add_u32 v9, s31, v9")
    for n in range(4):
        for e2 in range(2):
            A("ds_read_b64_tr_b16 %s, v9 offset:%d", RR(144 + 4*n + 2*e2, 2), n*32 + e2*1024)
    A("s_lshl_b32 s31, s77, 12")
    A("s_add_u32 s31, s31, %s", hex(WS_WD))
    A("s_lshl_b32 s%d, s77, 7", sD2)
    A("s_add_u32 s%d, s%d, %s", sD2, sD2, hex(FL_W))
    for n in range(4):
        A("s_waitcnt lgkmcnt(%d)", 6 - 2*n)
        A("buffer_store_dwordx4 %s, v%d, %s, s31 offen offset:%d sc1", RR(144 + 4*n, 4), VW, WS, n*1024)
    A("s_branch G_up2")
    A.label("G_up1")
    stats_calc(A, 144, 184, "s39")
    A("v_lshrrev_b32 v10, 1, v0")
    A("v_and_b32 v9, 7, v0")
    A("v_cmp_eq_u32 vcc, 0, v9")
    A("v_bfrev_b32 v11, 1")
    A("s_lshl_b32 s31, s77, 5")
    A("v_cndmask_b32 v10, v11, v10, vcc")
    A("s_add_u32 s31, s31, %s", hex(WS_ST))
    A("s_lshl_b32 s%d, s77, 7", sD2)
    A("s_add_u32 s%d, s%d, %s", sD2, sD2, hex(FL_S))
    A("buffer_store_dword v184, v10, %s, s31 offen sc1", WS)
    A.label("G_up2")
    d_load(A, sCH, sD)
    emit(A, dg[6:])
    emit(A, dg)
    A(NONCE)
    A("s_waitcnt vmcnt(13) lgkmcnt(0)")
    A("s_barrier")
    stamp(A, 2)
    for r in reads_for(0, 0): A(r)

    ONES = ["s39"]
    def csum_fill():
        return ["v_dot2c_f32_bf16 v%d, %s, v%d" % (CSA + (q & 3), ONES[0], CF + q) for q in range(16)]
    csr = ["ds_read_b64_tr_b16 %s, v%d offset:%d" % (RR(CF + 2*q, 2), CA, (q >> 1)*2048 + (q & 1)*512) for q in range(8)]
    av = ["v_add_u32 v%d, s66, v%d" % (r, r) for r in list(range(XA, XA + 4)) + [WA, WA + 1, CA]]
    stage_adv = ["s_cmp_eq_u32 s35, 2", "s_cselect_b32 s66, %d, s36" % (-2*STAGE), "s_cselect_b32 s35, -1, s35", "s_add_u32 s35, s35, 1"]

    def chunk(kind, extra):
        for s in range(4):
            b = s & 1
            m = mfma_list(b)
            A("s_waitcnt lgkmcnt(0)")
            if P["ST2"] == 2 and kind == "c9" and s > 0: stamp(A, s)
            if s < 3:
                rd = reads_for(s + 1, b ^ 1)
                sched = [2, 2, 2, 2, 1, 1, 0, 0]
                k = 0
                for i in range(8):
                    A(m[i])
                    for _ in range(sched[i]):
                        A(rd[k]); k += 1
                    for x in extra.get((s, i), []): A(x)
                    if s == 0 and i >= 4:
                        for x in csr[2*(i - 4):2*(i - 4) + 2]: A(x)
                if s == 1:
                    for x in csum_fill(): A(x)
            else:
                A(m[0])
                for x in extra.get("prebar", []): A(x)
                A("s_barrier")
                if kind == "c9": return
                rd = reads_for(0, 0)
                sched = [2, 2, 2, 2, 2, 0, 0, 0]
                k = 0
                for i in range(8):
                    if i > 0: A(m[i])
                    for _ in range(sched[i]):
                        A(rd[k]); k += 1
                    for x in extra.get((s, i), []):
                        if callable(x): x()
                        else: A(x)
    def adv(ex):
        ex.setdefault((2, 5), []).extend(stage_adv)
        ex.setdefault((2, 6), []).extend([av[0], av[4], av[5]])
        ex.setdefault((2, 7), []).extend([av[1], av[2]])
        ex.setdefault((3, 5), []).extend([av[3], av[6]])

    A.label("G_loop")
    A("s_cmp_eq_u32 s34, 1")
    A("s_cbranch_scc0 G_nosig")
    nonce_get(A, "g")
    A("s_cmp_gt_u32 s%d, 0x70000000", sD2)
    A("s_cbranch_scc1 G_nosig")
    A("buffer_store_dwordx2 v[%d:%d], v252, %s, s%d offen sc1", VNO, VNO + 1, WS, sD2)
    A.label("G_nosig")
    if P["PERCH"]:
        A("s_memtime s[98:99]")
        A("s_waitcnt lgkmcnt(0)")
        A("s_mov_b32 m0, s34")
        A("v_writelane_b32 v249, s98, m0")
    ex = {}
    pos = [(0, 1), (0, 3), (0, 6), (0, 7), (1, 2), (1, 4), (1, 5), (1, 6), (1, 7), (2, 2), (2, 3), (2, 4)]
    for k in range(12): ex.setdefault(pos[k], []).extend(dg[k])
    adv(ex)
    ex["prebar"] = ["s_waitcnt vmcnt(12)"]
    ex.setdefault((3, 7), []).extend(["s_add_u32 s34, s34, 1", "s_cmp_lt_u32 s34, 8"])
    chunk("loop", ex)
    A("s_cbranch_scc1 G_loop")
    stamp(A, 3)
    A("s_mov_b32 s38, s39")
    ONES[0] = "s38"
    ex = {}
    ex[(1, 7)] = [POLL]
    ex[(1, 5)] = w_setup()[:4]
    ex[(1, 6)] = w_setup()[4:]
    adv(ex)
    ex["prebar"] = ["s_waitcnt vmcnt(0)"]
    def after8():
        if P["P1ONLY"]:
            for i in range(4, 10): stamp(A, i)
            if P["PERCH"]:
                A("s_waitcnt lgkmcnt(0)")
                A("s_mov_b32 s98, s86")
                for i in range(1, 8): A("v_readlane_b32 s%d, v249, %d", 82 + 2*i, i)
                A("v_readlane_b32 s82, v249, 0")
                A("s_nop 4")
            stamp_dump(A)
            A("s_endpgm")
        if P["ST2"] == 1: stamp(A, 1)
        poll_check(A, "g", False)
        if P["ST2"] == 1: stamp(A, 2)
    ex.setdefault((3, 7), []).append(after8)
    chunk("c8", ex)
    cl_ = conv_loads(sCH, sCL)
    st_ = [["buffer_load_dword v%d, v7, %s, s3 offen offset:%d sc1" % (VSTA + tt, WS, 128*tt)] for tt in range(2)]
    wi = P["W9"]
    ex = {}
    seq = st_ + WL[:wi]
    slots = [(s, i) for s in range(2) for i in range(8)]
    for k, g in enumerate(seq):
        ex.setdefault(slots[(k*len(slots))//len(seq)], []).extend(g)
    for k, g in enumerate(cl_):
        ex.setdefault((2, min(k, 7)), []).extend(g)
    fin = ["v_add_f32 v%d, v%d, v%d" % (CSA, CSA, CSA + 1), "v_add_f32 v%d, v%d, v%d" % (CSA + 2, CSA + 2, CSA + 3), "v_add_f32 v%d, v%d, v%d" % (CSA, CSA, CSA + 2),
           "v_mov_b32 v%d, v%d" % (CSA + 1, CSA)]
    ex[(2, 3)] = ex.get((2, 3), []) + fin
    ex[(2, 4)] = ex.get((2, 4), []) + ["s_nop 0", "v_permlane32_swap_b32 v%d, v%d" % (CSA, CSA + 1)]
    ex[(2, 5)] = ex.get((2, 5), []) + ["v_add_f32 v%d, v%d, v%d" % (CSA, CSA, CSA + 1), "ds_write_b32 v8, v%d" % CSA]
    chunk("c9", ex)
    m = mfma_list(1)
    CSR = {(0, 0): 144, (1, 0): 208, (0, 1): 168, (1, 1): 144}
    def csrd(mat, ft): return ["ds_read_b128 %s, v6 offset:%d" % (RR(CSR[(mat, ft)] + 4*i, 4), (mat*64 + ft*32 + 8*i)*4) for i in range(4)]
    ST = [224, 228]
    fill = [[x] for x in csrd(0, 0) + csrd(1, 0)]
    fill.append(["s_waitcnt vmcnt(%d)" % (wi + 6)])
    for tt in range(2):
        fill.append(["v_and_b32 v%d, 0xffff0000, v%d" % (ST[tt] + 3, VSTA + tt), "v_lshlrev_b32 v%d, 16, v%d" % (ST[tt], VSTA + tt)])
        fill.append(["v_rcp_f32 v%d, v%d" % (ST[tt] + 1, ST[tt] + 3), "v_xor_b32 v%d, 0x80000000, v%d" % (ST[tt], ST[tt])])
        fill.append(["v_mul_f32 v%d, v%d, v%d" % (ST[tt] + 2, ST[tt] + 3, ST[tt] + 3), "v_mul_f32 v%d, %s, v%d" % (ST[tt] + 1, f2h(-LOG2E), ST[tt] + 1)])
    interleave(A, m[1:], fill, 0, 7)
    A("s_waitcnt lgkmcnt(0)")
    A("s_nop 7")
    A("s_nop 3")
    stamp(A, 4)
    for x in csrd(0, 1): A(x)
    T = 160; cnt = 0
    PO = [184, 188, 200, 204]
    we_end = wi + P["WE"]
    for ft in range(2):
        if ft == 1:
            for x in csrd(1, 1): A(x)
            A("s_waitcnt lgkmcnt(0)")
        for tt in range(2):
            st = ST[tt]
            g0 = acc(ft, tt); u0 = acc(2 + ft, tt)
            cg = CSR[(0, ft)]; cu = CSR[(1, ft)]
            for p in range(2):
                po = PO[cnt % 4]; cnt += 1
                prs = [8*p + 2*q for q in range(4)]
                seq = []
                seq += ["v_pk_fma_f32 %s, %s, %s, %s op_sel_hi:[1,0,1]" % (RR(g0 + q, 2), RR(cg + q, 2), RR(st, 2), RR(g0 + q, 2)) for q in prs]
                seq += ["v_pk_mul_f32 %s, %s, %s op_sel:[0,1] op_sel_hi:[1,1]" % (RR(T + 2*n, 2), RR(g0 + q, 2), RR(st, 2)) for n, q in enumerate(prs)]
                seq += ["v_exp_f32 v%d, v%d" % (T + n, T + n) for n in range(8)]
                seq += ["v_pk_fma_f32 %s, %s, %s, %s op_sel_hi:[1,0,1]" % (RR(u0 + q, 2), RR(cu + q, 2), RR(st, 2), RR(u0 + q, 2)) for q in prs]
                seq += ["v_pk_fma_f32 %s, %s, %s, %s op_sel_hi:[1,0,0]" % (RR(T + 2*n, 2), RR(T + 2*n, 2), RR(st + 2, 2), RR(st + 2, 2)) for n in range(4)]
                seq += ["v_rcp_f32 v%d, v%d" % (T + n, T + n) for n in range(8)]
                seq += ["v_pk_mul_f32 %s, %s, %s" % (RR(g0 + q, 2), RR(g0 + q, 2), RR(u0 + q, 2)) for q in prs]
                seq += ["v_pk_mul_f32 %s, %s, %s" % (RR(g0 + q, 2), RR(g0 + q, 2), RR(T + 2*n, 2)) for n, q in enumerate(prs)]
                seq += ["v_cvt_pk_bf16_f32 v%d, v%d, v%d" % (po + n, g0 + q, g0 + q + 1) for n, q in enumerate(prs)]
                tgt = P["W9"] + (P["WE"]*cnt)//8
                interleave(A, seq, WL[wi:tgt], 0, 30)
                wi = tgt
                A("buffer_store_dwordx4 %s, v%d, %s, s%d offen offset:%d sc1", RR(po, 4), VST, WS, 78 + ft, tt*2048 + p*512)
    stamp(A, 5)
    A("s_waitcnt vmcnt(%d)", 8 + wi - P["W9"])
    return wi

def d_load(A, ch, d):
    A("s_lshr_b32 s31, s%d, 1", ch)
    A("s_lshl_b32 s31, s31, 2")
    A("s_load_dword s%d, s[14:15], s31", d)

def conv_loads(ch, cl):
    g = []
    g.append(["s_lshl_b32 s31, s%d, 12" % ch,
              "s_add_u32 s%d, s12, s31" % SB, "s_addc_u32 s%d, s13, 0" % (SB + 1), "s_mov_b32 s%d, 4096" % (SB + 2), "s_mov_b32 s%d, 0x20000" % (SB + 3)])
    g.append(["s_lshl_b32 s37, s%d, 11" % sHW, "s_add_u32 s37, s37, -8", "v_add_u32 v%d, s37, v%d" % (T0, VW), "s_add_u32 s31, s31, %s" % hex(WS_UT)])
    g.append(["v_cmp_gt_i32 vcc, 0, v%d" % T0, "v_bfrev_b32 v%d, 1" % VA, "v_add_u32 v%d, 8, v%d" % (VB, T0), "v_cndmask_b32 v%d, v%d, v%d, vcc" % (T0, T0, VA)])
    g.append(["buffer_load_dwordx4 %s, v%d, %s, s31 offen sc1" % (RR(URAW + 2, 4), VB, WS)])
    g.append(["buffer_load_dwordx2 %s, v%d, %s, s31 offen sc1" % (RR(URAW, 2), T0, WS)])
    g.append(["buffer_load_dwordx4 %s, v%d, %s, s31 offen offset:1024 sc1" % (RR(URAW + 8, 4), VB, WS)])
    g.append(["buffer_load_dwordx2 %s, v%d, %s, s31 offen offset:1016 sc1" % (RR(URAW + 6, 2), VB, WS),
              "s_add_u32 s37, s37, s%d" % cl, "s_add_u32 m0, s37, %d" % (CONV_H + 512 + 8), "s_nop 0"])
    g.append(["buffer_load_dwordx4 v%d, s[%d:%d], 0 offen lds" % (VB, SB, SB + 3)])
    g.append(["buffer_load_dwordx4 v%d, s[%d:%d], 0 offen offset:1024 lds" % (VB, SB, SB + 3)])
    return g

def gen_conv(A, tag, wl, nextloads, pub):
    A.c("================ conv %s ================" % tag)
    A.label("L_conv" + tag)
    TMP = 48
    A("s_lshl_b32 s34, s%d, 11", sHW)
    A("s_add_u32 s35, s34, s%d", sCL)
    A("v_add_u32 v%d, s35, v%d", T0, VW)
    for j in range(2):
        d = URAW + 6*j
        t = TMP + 12*j
        A("ds_write_b128 v%d, %s offset:%d", T0, RR(d + 2, 4), 32 + 1024*j)
        for k in range(4): A("v_alignbit_b32 v%d, v%d, v%d, 16", t + k, d + 2 + k, d + 1 + k)
        A("ds_write_b128 v%d, %s offset:%d", T0, RR(t, 4), CPY + 32 + 1024*j)
        for k in range(4): A("v_mov_b32 v%d, v%d", t + 4 + k, d + 1 + k)
        A("ds_write_b128 v%d, %s offset:%d", T0, RR(t + 4, 4), 2*CPY + 32 + 1024*j)
        for k in range(4): A("v_alignbit_b32 v%d, v%d, v%d, 16", t + 8 + k, d + 1 + k, d + k)
        A("ds_write_b128 v%d, %s offset:%d", T0, RR(t + 8, 4), 3*CPY + 32 + 1024*j)
    A("v_mov_b32 v16, 0"); A("v_mov_b32 v17, 0")
    A("v_lshlrev_b32 v%d, 3, v0", T0)
    A("v_add_u32 v%d, s%d, v%d", T0, sCL, T0)
    A("ds_write_b64 v%d, v[16:17] offset:%d", T0, CONV_H)
    VAc = 250; VBc = 251
    A("v_bfe_u32 v%d, v0, 2, 2", T0)
    A("v_mul_u32_u24 v%d, %d, v%d", VAc, CPY, T0)
    A("v_and_b32 v%d, 3, v0", T0)
    A("v_lshl_add_u32 v%d, v%d, 3, v%d", VAc, T0, VAc)
    A("v_add_u32 v%d, s%d, v%d", VAc, sCL, VAc)
    A("ds_write_b64 v%d, v[16:17]", VAc)
    A("v_lshrrev_b32 v%d, 4, v0", T0)
    A("v_lshlrev_b32 v%d, 4, v%d", T1, T0)
    A("v_sub_u32 v%d, v%d, v%d", VAc, VAc, T1)
    A("s_lshl_b32 s34, s%d, 8", sHW)
    A("s_add_u32 s31, s34, 56")
    A("v_add_u32 v%d, s31, v%d", VAc, VAc)
    A("v_and_b32 v%d, 15, v0", VBc)
    A("v_lshlrev_b32 v%d, 5, v%d", VBc, VBc)
    A("s_sub_u32 s31, s%d, s34", sCL)
    A("s_add_u32 s31, s31, %d", CONV_H + 480 - 192)
    A("v_add3_u32 v%d, v%d, v%d, s31", VBc, VBc, T1)
    if pub:
        A("v_mov_b32 v%d, s%d", VNF, sN)
        A("v_mov_b32 v%d, s%d", VNF + 1, sN + 1)
    A("s_waitcnt lgkmcnt(0)")
    A("s_barrier")
    if P["ST2"] and tag == str(P["ST2"] - 1): stamp(A, 1)
    def afr(b, p): return CFR[b] + 4*p
    def bfr(b, r): return CFR[b] + 32 + 4*r
    def creads(c, b):
        out = []
        for i in range(8):
            out.append(["ds_read_b128 %s, v%d offset:%d" % (RR(bfr(b, i), 4), VBc, 512*i + 192 - 64*c)])
            out.append(["ds_read_b64_tr_b16 %s, v%d offset:%d" % (RR(afr(b, i), 2), VAc, 512*i + 64*c + 8)])
            out.append(["ds_read_b64_tr_b16 %s, v%d offset:%d" % (RR(afr(b, i) + 2, 2), VAc, 512*i + 64*c)])
        return out
    for k, g in enumerate(creads(0, 0)):
        A(g[0])
        if k == 11: A("s_waitcnt lgkmcnt(2)")
    vm = list(wl)
    if nextloads: vm = conv_loads(36, sCLn) + vm
    per = (len(vm) + 3)//4
    nvm = 0; mcount = 0
    EXA = 253
    for c in range(4):
        b = c & 1
        A("s_waitcnt lgkmcnt(0)")
        m = []; seen = set()
        for p in range(8):
            for r in range(8 - p):
                q = p + r
                a = RR(CACC + 4*q, 4)
                cin = "0" if (c == 0 and q not in seen) else a
                seen.add(q)
                m.append("v_mfma_f32_16x16x32_bf16 %s, %s, %s, %s" % (a, RR(afr(b, p), 4), RR(bfr(b, r), 4), cin))
        mine = vm[c*per:(c + 1)*per]
        if c < 3: fill = merge(creads(c + 1, b ^ 1), mine)
        else:
            fill = mine + [["s_lshl_b32 s31, s%d, 12" % sW, "s_add_u32 s31, s31, %d" % L_EX, "v_add_u32 v%d, s31, v%d" % (EXA, VW)],
                           ["v_xor_b32 v%d, 4096, v%d" % (EXA + 1, EXA)],
                           ["v_lshrrev_b32 v%d, 4, v0" % T0], ["v_lshlrev_b32 v%d, 3, v%d" % (T0, T0)], ["v_and_b32 v%d, 15, v0" % T1],
                           ["v_lshl_add_u32 v%d, v%d, 5, v%d" % (T0, T1, T0)], ["v_add_u32 v%d, s35, v%d" % (T0, T0)], ["v_add_u32 v%d, s35, v%d" % (T1, VW)]]
            fill += [["ds_read_b64 %s, v%d offset:%d" % (RR(CFR[0] + 2*q, 2), T0, 512*q + 32)] for q in range(4)]
        if pub and c*36 <= P["PUB"] < (c + 1)*36:
            frac = (P["PUB"] - c*36)/36.0
            at = int(len(fill)*frac)
            before = nvm + sum(1 for g in fill[:at] for x in g if x.startswith("buffer_"))
            fill = fill[:at] + [["s_waitcnt vmcnt(%d)" % before, "buffer_store_dwordx2 v[%d:%d], v252, %s, s%d offen sc1" % (VNF, VNF + 1, WS, sHF)]] + fill[at:]
        nvm += sum(1 for g in mine for x in g if x.startswith("buffer_"))
        interleave(A, m, fill, 0, 31)
    if P["ST2"] and tag == str(P["ST2"] - 1): stamp(A, 2)
    A("s_and_b32 s31, s%d, 1", sCH)
    A("s_lshl_b32 s31, s31, 4")
    A("s_lshr_b32 s34, s%d, s31", sD)
    A("s_lshl_b32 s34, s34, 16")
    A("s_lshl_b32 s31, s%d, 12", sCH)
    A("s_lshl_b32 s37, s%d, 11", sHW)
    A("s_add_u32 s31, s31, s37")
    A("s_add_u32 s31, s31, %s", hex(WS_YT))
    A("s_cmp_eq_u32 s%d, 0", sHW)
    A("s_cbranch_scc0 C_hi%s", tag)
    for q in range(4): A("ds_write_b128 v%d, %s offset:%d", EXA, RR(CACC + 16 + 4*q, 4), 1024*q)
    A("s_branch C_x%s", tag)
    A.label("C_hi" + tag)
    for q in range(4): A("ds_write_b128 v%d, %s offset:%d", EXA, RR(CACC + 4*q, 4), 1024*q)
    A("s_waitcnt lgkmcnt(0)")
    for k in range(16): A("v_mov_b32 v%d, v%d", CACC + k, CACC + 16 + k)
    A.label("C_x" + tag)
    R0 = CFR[0]; U = R0 + 16; PX = R0 + 32
    A("s_waitcnt lgkmcnt(0)")
    A("s_barrier")
    for q in range(4): A("ds_read_b128 %s, v%d offset:%d", RR(PX + 4*q, 4), EXA + 1, 1024*q)
    for q in range(4):
        for h in range(2):
            A("v_lshlrev_b32 v%d, 16, v%d", U + 4*q + 2*h, R0 + 2*q + h)
            A("v_and_b32 v%d, 0xffff0000, v%d", U + 4*q + 2*h + 1, R0 + 2*q + h)
    for k in range(16): A("v_fmac_f32 v%d, s34, v%d", CACC + k, U + k)
    A("s_waitcnt lgkmcnt(0)")
    for k in range(8): A("v_pk_add_f32 %s, %s, %s", RR(CACC + 2*k, 2), RR(CACC + 2*k, 2), RR(PX + 2*k, 2))
    for q in range(4):
        for h in range(2): A("v_cvt_pk_bf16_f32 v%d, v%d, v%d", R0 + 2*q + h, CACC + 4*q + 2*h, CACC + 4*q + 2*h + 1)
        A("ds_write_b64 v%d, %s offset:%d", T0, RR(R0 + 2*q, 2), CONV_H + 512*q)
    A("s_waitcnt lgkmcnt(0)")
    YO = 160
    for j in range(2): A("ds_read_b128 %s, v%d offset:%d", RR(YO + 4*j, 4), T1, CONV_H + 1024*j)
    for j in range(2):
        A("s_waitcnt lgkmcnt(%d)", 1 - j)
        A("buffer_store_dwordx4 %s, v%d, %s, s31 offen offset:%d sc1", RR(YO + 4*j, 4), VW, WS, 1024*j)
    return nvm

def hloads(j):
    b = RING + 16*(j % 4)
    out = [["buffer_load_dwordx4 %s, v%d, %s, s%d offen sc1" % (RR(b + 4*i, 4), VH + i, WS, sHP)] for i in range(4)]
    out[3] += ["s_cmp_eq_u32 s%d, 0" % sKH,
               "s_cselect_b32 s31, %d, s38" % (53*4096),
               "s_cselect_b32 s%d, 54, s%d" % (sKH, sKH),
               "s_sub_u32 s%d, s%d, 1" % (sKH, sKH),
               "s_add_u32 s%d, s%d, s31" % (sHP, sHP)]
    return out

def gen_gemm2(A):
    A.c("================ GEMM2 ================")
    A.label("L_gemm2")
    stamp(A, 6)
    VPA2 = 216; VPL2 = 218
    A("s_cmp_ge_u32 s%d, 2", sW)
    A("s_cselect_b32 s67, 13, 14")
    A("s_sub_u32 s31, s67, 1")
    A("v_min_u32 v%d, s31, v0", VPA2)
    A("v_add_u32 v%d, s%d, v%d", VPA2, sK0, VPA2)
    A("v_cmp_le_u32 vcc, 54, v%d", VPA2)
    A("v_add_u32 v%d, -54, v%d", T0, VPA2)
    A("s_lshl_b32 s64, s%d, 12", sR2)
    A("v_cndmask_b32 v%d, v%d, v%d, vcc", VPA2, VPA2, T0)
    A("s_add_u32 s64, s64, %s", hex(FL_H))
    A("v_lshrrev_b32 v%d, 1, v%d", VPA2, VPA2)
    A("v_lshlrev_b32 v%d, 7, v%d", VPA2, VPA2)
    HP = "buffer_load_dwordx2 v[%d:%d], v%d, %s, s64 offen sc1" % (VPL2, VPL2 + 1, VPA2, WS)
    A(HP)
    A("s_cmp_ge_u32 s%d, 2", sW)
    A("s_cbranch_scc1 M_no13")
    emit(A, wloads(13))
    A.label("M_no13")
    A("s_lshl_b32 s31, s%d, 10", sW)
    A("v_add_u32 v%d, s31, v%d", VH, VW)
    for i in range(1, 4): A("v_xor_b32 v%d, %d, v%d", VH + i, 1024*i, VH)
    for i in range(3):
        A("v_add_u32 v%d, %d, v0", T0, 64*i)
        A("v_mul_u32_u24 v%d, 205, v%d", T1, T0)
        A("v_lshrrev_b32 v%d, 11, v%d", T1, T1)
        A("v_mul_u32_u24 v%d, %d, v%d", VX + i, 1280 - 160, T1)
        A("v_lshl_add_u32 v%d, v%d, 4, v%d", VX + i, T0, VX + i)
    A("v_cmp_gt_u32 vcc, 32, v0")
    A("v_bfrev_b32 v%d, 1", T0)
    A("v_lshrrev_b32 v%d, 3, v0", T1)
    A("v_cndmask_b32 v%d, v%d, v%d, vcc", VX + 2, T0, VX + 2)
    A("v_lshlrev_b32 v%d, 12, v%d", VY0, T1)
    A("v_and_b32 v%d, 7, v0", T1)
    A("v_lshl_add_u32 v%d, v%d, 4, v%d", VY0, T1, VY0)
    A("v_cndmask_b32 v%d, v%d, v%d, vcc", VY2, T0, VY0)
    A("s_lshl_b32 s31, s%d, 2", sR2)
    A("s_add_u32 s31, s31, s%d", sW)
    A("s_mul_i32 s%d, s31, %d", sXO, 16*1280)
    A("s_lshl_b32 s34, s31, 6")
    A("s_add_u32 s34, s34, %s", hex(WS_ST))
    A("s_mul_i32 s31, s%d, 160", sC2)
    A("s_add_u32 s%d, s%d, s31", sXO, sXO)
    A("s_mul_i32 s%d, s%d, 3072", sXL, sW)
    A("s_add_u32 s%d, s%d, %d", sXL, sXL, L_XT)
    for i in range(3):
        A("s_add_u32 m0, s%d, %d", sXL, 1024*i)
        A("s_nop 0")
        A("buffer_load_dwordx4 v%d, s[%d:%d], s%d offen lds", VX + i, SX, SX + 3, sXO)
    A("v_and_b32 v%d, 15, v0", T0)
    A("v_lshlrev_b32 v%d, 2, v%d", T0, T0)
    A("buffer_load_dword v%d, v%d, %s, s34 offen sc1", VSTAT, T0, WS)
    A("s_mul_i32 s60, s%d, 80", sC2)
    A("s_mul_i32 s31, s%d, 20", sW)
    A("s_add_u32 s60, s60, s31")
    A("s_lshl_b32 s63, s60, 1")
    A("s_lshr_b32 s31, s%d, 4", sR2)
    A("s_add_u32 s63, s63, s31")
    A("s_lshl_b32 s63, s63, 7")
    A("s_add_u32 s63, s63, %s", hex(FL_Y))
    A("s_lshl_b32 s60, s60, 12")
    A("s_lshl_b32 s31, s%d, 7", sR2)
    A("s_add_u32 s60, s60, s31")
    A("s_add_u32 s60, s60, %s", hex(WS_YT))
    A("s_add_u32 s61, s60, 0x8000")
    A("s_add_u32 s62, s60, 0x10000")
    A("v_min_u32 v%d, 19, v0", VA)
    A("v_lshlrev_b32 v%d, 8, v%d", VA, VA)
    A("v_lshlrev_b32 v%d, 1, v0", VB)
    A("v_add_u32 v%d, s%d, v%d", VB, sYF, VB)
    A("v_lshlrev_b32 v%d, 8, v%d", VB, VB)
    A("v_cmp_gt_u32 vcc, s%d, v0", sNY)
    A("v_bfrev_b32 v%d, 1", T0)
    A("s_lshl_b32 s65, s%d, 7", sHW)
    A("v_cndmask_b32 v%d, v%d, v%d, vcc", VB, T0, VB)
    A("s_add_u32 s65, s65, %s", hex(FL_Y))
    for r in range(GACC, GACC + 80): A("v_mov_b32 v%d, 0", r)
    A("s_add_u32 s%d, s%d, s67", sKH, sK0)
    A("s_sub_u32 s%d, s%d, 1", sKH, sKH)
    A("s_cmp_ge_u32 s%d, 54", sKH)
    A("s_cselect_b32 s31, 54, 0")
    A("s_sub_u32 s%d, s%d, s31", sKH, sKH)
    A("s_mul_i32 s31, s%d, %d", sR2, 54*4096)
    A("s_lshl_b32 s%d, s%d, 12", sHP, sKH)
    A("s_add_u32 s%d, s%d, s31", sHP, sHP)
    A("s_mov_b32 s38, -4096")
    A("s_waitcnt vmcnt(0)")
    A("buffer_store_dwordx2 v[%d:%d], v%d, %s, s65 offen sc1", VNF, VNF + 1, VB, WS)
    A.label("M_poll")
    A("v_cmp_ne_u64 vcc, s[%d:%d], v[%d:%d]", sN, sN + 1, VPL2, VPL2 + 1)
    A("s_add_u32 s%d, s%d, 1", sSP, sSP)
    A("s_cmp_gt_u32 s%d, 0x80000", sSP)
    A("s_cbranch_scc1 M_go")
    A("s_nop 1")
    A("s_cbranch_vccz M_go")
    A(HP)
    A("s_waitcnt vmcnt(0)")
    A("s_branch M_poll")
    A.label("M_go")
    stamp(A, 7)
    A("s_cmp_lt_u32 s%d, 2", sW)
    A("s_cbranch_scc1 M_pro14")
    for j in range(12, 9, -1): emit(A, hloads(j))
    A("s_branch M_step12")
    A.label("M_pro14")
    for j in range(13, 10, -1): emit(A, hloads(j))
    XR = 176; XF = 188; XN = 208; YR = 228; RS = 240; NM = 241; VR = 242; VT = 243; YP = 246
    yl = ["buffer_load_dwordx4 %s, v%d, %s, s60 offen sc1" % (RR(YR, 4), VY0, WS),
          "buffer_load_dwordx4 %s, v%d, %s, s61 offen sc1" % (RR(YR + 4, 4), VY0, WS),
          "buffer_load_dwordx4 %s, v%d, %s, s62 offen sc1" % (RR(YR + 8, 4), VY2, WS)]
    YPOLL = "buffer_load_dwordx2 v[%d:%d], v%d, %s, s63 offen sc1" % (YP, YP + 1, VA, WS)
    xprep = [["v_and_b32 v%d, 15, v0" % VR], ["v_mul_u32_u24 v%d, 160, v%d" % (VR, VR)], ["v_lshrrev_b32 v%d, 4, v0" % VT],
             ["v_lshl_add_u32 v%d, v%d, 3, v%d" % (VR, VT, VR)], ["v_add_u32 v%d, s%d, v%d" % (VR, sXL, VR)]]
    xprep += [["ds_read_b64 %s, v%d offset:%d" % (RR(XR + 2*nt, 2), VR, 32*nt)] for nt in range(5)]
    xprep += [["v_and_b32 v%d, 0xffff0000, v%d" % (RS, VSTAT)], ["v_lshlrev_b32 v%d, 16, v%d" % (NM, VSTAT)], ["v_rcp_f32 v%d, v%d" % (RS, RS)]]
    xp2 = [["s_waitcnt lgkmcnt(0)", "v_mul_f32 v%d, v%d, v%d" % (NM, NM, RS)]]
    for k in range(10):
        xp2.append(["v_lshlrev_b32 v%d, 16, v%d" % (XF + 2*k, XR + k)])
        xp2.append(["v_and_b32 v%d, 0xffff0000, v%d" % (XF + 2*k + 1, XR + k)])
    xp3 = [["v_fma_f32 v%d, v%d, v%d, -v%d" % (XN + k, XF + k, RS, NM)] for k in range(20)]
    tailp = []
    for i in range(1, 4):
        tailp.append(["s_xor_b32 s31, s%d, %d" % (sW, i), "s_mul_i32 s31, s31, 15360", "s_add_u32 s31, s31, %d" % (L_RED + (i - 1)*5120), "v_add_u32 v%d, s31, v%d" % (247 + i, VW)])
    tailp += [["v_lshrrev_b32 v%d, 3, v0" % VT], ["v_mul_u32_u24 v%d, 160, v%d" % (VT, VT)], ["v_and_b32 v%d, 7, v0" % T0], ["v_lshl_add_u32 v%d, v%d, 4, v%d" % (VT, T0, VT)],
              ["s_mul_i32 s31, s%d, 3200" % sW, "s_add_u32 s31, s31, %d" % L_YT, "v_add_u32 v%d, s31, v%d" % (VT, VT)],
              ["s_mul_i32 s31, s%d, 15360" % sW, "s_add_u32 s31, s31, %d" % L_RED, "v_add_u32 v%d, s31, v%d" % (T0, VW)],
              ["v_lshrrev_b32 v%d, 2, v0" % T1], ["v_mul_u32_u24 v%d, 160, v%d" % (T1, T1)], ["v_and_b32 v251, 3, v0"], ["v_lshl_add_u32 v%d, v251, 3, v%d" % (T1, T1)],
              ["s_lshl_b32 s31, s%d, 5" % sW, "s_add_u32 s31, s31, %d" % L_YT, "v_add_u32 v%d, s31, v%d" % (T1, T1)]]
    YPJ = 5
    for j in range(NS - 1, -1, -1):
        A.label("M_step%d" % j)
        n = 4*min(j, 2)
        if j in (YPJ - 1, YPJ - 2): n += 1
        if j < 2: n += 3
        A("s_waitcnt vmcnt(%d)", n)
        b = RING + 16*(j % 4); w = wslot(j)
        m = []
        order = [1, 2, 3, 0] if j == 0 else [0, 1, 2, 3]
        for i in order:
            for nt in range(5):
                a = RR(gacc(nt, i), 4)
                m.append("v_mfma_f32_16x16x32_bf16 %s, %s, %s, %s" % (a, RR(w + 4*nt, 4), RR(b + 4*i, 4), a))
        fill = hloads(j - 3) if j >= 3 else []
        if j == YPJ: fill = [[YPOLL]] + fill
        if j == 10: fill += xprep
        if j == 9: fill += xp2[:11]
        if j == 8: fill += xp2[11:]
        if j == 7: fill += xp3[:10]
        if j == 6: fill += xp3[10:]
        if j == 2: fill = [["v_cmp_ne_u64 s[34:35], s[%d:%d], v[%d:%d]" % (sN, sN + 1, YP, YP + 1)]] + [[x] for x in yl] + fill
        if j == 1: fill += tailp
        if j == 0:
            wr = [["ds_write_b128 v%d, %s offset:%d" % (247 + i, RR(gacc(nt, i), 4), 1024*nt)] for i in range(1, 4) for nt in range(5)]
            interleave(A, m, wr[:8], 10, 20)
            stamp(A, 8)
            emit(A, wr[8:])
        else:
            interleave(A, m, fill, 0, 19)
    A("s_cmp_eq_u64 s[34:35], 0")
    A("s_cbranch_scc1 M_yok")
    A.label("M_ychk")
    A(YPOLL)
    A("s_add_u32 s%d, s%d, 0x1000", sSP, sSP)
    A("s_waitcnt vmcnt(0)")
    A("v_cmp_ne_u64 vcc, s[%d:%d], v[%d:%d]", sN, sN + 1, YP, YP + 1)
    A("s_cmp_gt_u32 s%d, 0x7f000000", sSP)
    A("s_cbranch_scc1 M_yre")
    A("s_nop 1")
    A("s_cbranch_vccnz M_ychk")
    A.label("M_yre")
    for x in yl: A(x)
    A.label("M_yok")
    A("s_waitcnt vmcnt(0) lgkmcnt(8)")
    A("ds_write_b128 v%d, %s", VT, RR(YR, 4))
    A("ds_write_b128 v%d, %s offset:1280", VT, RR(YR + 4, 4))
    A("s_mov_b32 exec_hi, 0")
    A("ds_write_b128 v%d, %s offset:2560", VT, RR(YR + 8, 4))
    A("s_mov_b32 exec_hi, -1")
    srd(A, SA, 24, X_BYTES)
    for k in range(10):
        A("v_pk_add_f32 %s, %s, %s", RR(XF + 2*k, 2), RR(XF + 2*k, 2), RR(GACC + 2*k, 2))
    A("s_waitcnt lgkmcnt(0)")
    A("s_barrier")
    stamp(A, 9)
    PR = 96
    for nt in range(5):
        A("ds_read_b64_tr_b16 %s, v%d offset:%d", RR(YR + 2*nt, 2), T1, nt*16*160)
    for nt in range(5):
        for i in range(3):
            if nt*3 + i == 9: A("s_waitcnt lgkmcnt(4)")
            A("ds_read_b128 %s, v%d offset:%d", RR(PR + (nt*3 + i)*4, 4), T0, i*5120 + nt*1024)
    YF = 36
    for k in range(10):
        A("v_lshlrev_b32 v%d, 16, v%d", YF + 2*k, YR + k)
        A("v_and_b32 v%d, 0xffff0000, v%d", YF + 2*k + 1, YR + k)
    for k in range(10):
        A("v_pk_fma_f32 %s, %s, %s, %s", RR(XF + 2*k, 2), RR(XN + 2*k, 2), RR(YF + 2*k, 2), RR(XF + 2*k, 2))
    A("s_waitcnt lgkmcnt(0)")
    for i in range(3):
        for nt in range(5):
            for h in range(2):
                A("v_pk_add_f32 %s, %s, %s", RR(XF + 4*nt + 2*h, 2), RR(XF + 4*nt + 2*h, 2), RR(PR + (nt*3 + i)*4 + 2*h, 2))
    for k in range(10):
        A("v_cvt_pk_bf16_f32 v%d, v%d, v%d", XR + k, XF + 2*k, XF + 2*k + 1)
    for nt in range(5):
        A("ds_write_b64 v%d, %s offset:%d", VR, RR(XR + 2*nt, 2), 32*nt)
    A("v_add_u32 v%d, s%d, v%d", T0, sXL, VW)
    A("s_waitcnt lgkmcnt(0)")
    for i in range(3):
        A("ds_read_b128 %s, v%d offset:%d", RR(PR + 4*i, 4), T0, 1024*i)
    for i in range(3):
        A("s_waitcnt lgkmcnt(%d)", 2 - i)
        A("buffer_store_dwordx4 %s, v%d, s[%d:%d], s%d offen", RR(PR + 4*i, 4), VX + i, SA, SA + 3, sXO)
    stamp_dump(A)
    A("s_endpgm")

def gen_helper(A, nw):
    A.c("================ helper path ================")
    A.label("L_helper")
    A("s_mul_i32 s35, s35, 20")
    A("s_lshl_b32 s36, s36, 2")
    A("s_add_u32 s32, s35, s36")
    A("s_add_u32 s32, s32, s34")
    A("s_lshl_b32 s33, s32, 2")
    A("s_add_u32 s33, s33, s%d", sW)
    A("v_lshrrev_b32 v1, 3, v0")
    A("v_and_b32 v2, 7, v0")
    A("s_mul_i32 s39, s32, 26")
    A("s_lshr_b32 s39, s39, 8")
    A("s_mul_i32 s31, s39, 10")
    A("s_sub_u32 s78, s32, s31")
    A("s_lshl_b32 s39, s39, 9")
    A("s_lshl_b32 s31, s%d, 7", sW)
    A("s_add_u32 s39, s39, s31")
    A("v_lshlrev_b32 v3, 4, v1")
    A("v_add_u32 v3, s39, v3")
    A("v_mul_u32_u24 v6, 1280, v3")
    A("v_lshl_add_u32 v6, v2, 4, v6")
    A("s_lshl_b32 s31, s78, 7")
    A("v_add_u32 v6, s31, v6")
    A("v_lshlrev_b32 v7, 6, v2")
    A("s_waitcnt lgkmcnt(0)")
    srd(A, SWT, 6, X_BYTES)
    srd(A, SA, 8, X_BYTES)
    srd(A, SB, 10, 640*8)
    srd(A, SDB, 26, 256)
    stamp(A, 1)
    A("s_cmp_lg_u32 s33, 0")
    A("s_cbranch_scc1 H_nonon")
    A("s_memrealtime s[34:35]")
    A("v_lshlrev_b32 v8, 20, v0")
    A("s_waitcnt lgkmcnt(0)")
    A("s_or_b32 s34, s34, 1")
    A("v_mov_b32 v248, s34")
    A("v_mov_b32 v249, s35")
    A("buffer_store_dwordx2 v[248:249], v8, s[%d:%d], 0 offen sc1", SDB, SDB + 3)
    A.label("H_nonon")
    KD = 16; VD = 92; SK = 156
    A("s_lshl_b32 s31, s78, 9")
    for i in range(4):
        A("buffer_load_dwordx4 %s, v7, s[%d:%d], s31 offen offset:%d", RR(SK + 4*i, 4), SB, SB + 3, 16*i)
    kvl = []
    for i in range(19):
        kvl.append(["v_add_u32 v12, %d, v6" % ((i - 3)*1280), "buffer_load_dwordx4 %s, v12, s[%d:%d], 0 offen" % (RR(KD + 4*i, 4), SWT, SWT + 3)])
        if i >= 3:
            kvl.append(["buffer_load_dwordx4 %s, v12, s[%d:%d], 0 offen" % (RR(VD + 4*(i - 3), 4), SA, SA + 3)])
    emit(A, kvl[:4])
    srd(A, SX, 4, X_BYTES)
    srd(A, SWS, 28, WS_END)
    A("s_and_b32 s%d, s%d, 1", sHW, sW)
    A("s_lshr_b32 s37, s%d, 1", sW)
    A("s_mul_i32 s34, s32, 6")
    A("s_add_u32 s34, s34, 432")
    A("s_lshl_b32 s35, s32, 2")
    A("s_add_u32 s35, s35, %d", 576 - 96)
    A("s_cmp_lt_u32 s32, 24")
    A("s_cselect_b32 s34, s34, s35")
    A("s_cselect_b32 s%d, 3, 2", sNY)
    A("s_add_u32 s%d, s34, s37", sYF)
    A("s_mov_b32 s%d, s%d", sCH, sYF)
    A("s_mul_i32 s31, s37, %d", CONV_SZ)
    A("s_add_u32 s34, s31, %d", L_CA)
    A("s_add_u32 s35, s31, %d", L_CB)
    A("s_cmp_lt_u32 s32, 24")
    A("s_cselect_b32 s%d, s34, s35", sCL)
    A("s_cselect_b32 s%d, s35, s34", sCLn)
    A("s_mov_b32 s%d, 0", sHF)
    A("s_lshr_b32 s31, s%d, 1", sCH)
    A("s_lshl_b32 s31, s31, 2")
    A("s_load_dword s%d, s[14:15], s31", sD)
    A("s_add_u32 s31, s31, 4")
    A("s_load_dword s%d, s[14:15], s31", sD2)
    A("s_add_u32 s31, s31, 4")
    A("s_min_u32 s31, s31, 1276")
    A("s_load_dword s79, s[14:15], s31")
    TP = 172; KU = 180; KS = 218; PO = 240
    A("v_mul_u32_u24 v9, %d, v2", 8*272)
    A("v_lshl_add_u32 v9, v1, 5, v9")
    A("s_mul_i32 s36, s%d, 17408", sW)
    A("v_add_u32 v9, s36, v9")
    A("v_mov_b32 v%d, 0", T1)
    for hb in range(2):
        if hb == 0:
            emit(A, kvl[4:25])
            A("s_waitcnt vmcnt(6)")
            stamp(A, 2)
        else:
            A("buffer_load_dwordx2 v[250:251], v%d, s[%d:%d], 0 offen sc1", T1, SDB, SDB + 3)
            A("s_waitcnt vmcnt(1)")
        seq = []
        for jp in range(4):
            for c in range(2):
                for d2 in range(2):
                    src = SK + 4*jp + 2*c + d2
                    seq.append("v_lshlrev_b32 v%d, 16, v%d" % (TP + 4*d2 + c, src))
                    seq.append("v_and_b32 v%d, 0xffff0000, v%d" % (TP + 4*d2 + 2 + c, src))
            for i in range(11):
                seq.append("v_lshlrev_b32 v%d, 16, v%d" % (KU + 2*i, KD + 4*(8*hb + i) + jp))
                seq.append("v_and_b32 v%d, 0xffff0000, v%d" % (KU + 2*i + 1, KD + 4*(8*hb + i) + jp))
            for t in range(8): seq.append("v_pk_mul_f32 %s, %s, %s" % (RR(KS + 2*t, 2), RR(TP + 6, 2), RR(KU + 2*t, 2)))
            for d in range(1, 4):
                for t in range(8): seq.append("v_pk_fma_f32 %s, %s, %s, %s" % (RR(KS + 2*t, 2), RR(TP + 6 - 2*d, 2), RR(KU + 2*(t + d), 2), RR(KS + 2*t, 2)))
            for t in range(8):
                seq.append("v_lshlrev_b32 v%d, 16, v%d" % (KU + 2*t, VD + 4*(8*hb + t) + jp))
                seq.append("v_and_b32 v%d, 0xffff0000, v%d" % (KU + 2*t + 1, VD + 4*(8*hb + t) + jp))
            for t in range(8): seq.append("v_pk_mul_f32 %s, %s, %s" % (RR(KS + 2*t, 2), RR(KS + 2*t, 2), RR(KU + 2*t, 2)))
            seq.append("s_waitcnt lgkmcnt(0)")
            for c in range(2):
                for t in range(4): seq.append("v_cvt_pk_bf16_f32 v%d, v%d, v%d" % (PO + 4*c + t, KS + 4*t + c, KS + 4*t + 2 + c))
            for c in range(2):
                seq.append("ds_write_b128 v9, %s offset:%d" % (RR(PO + 4*c, 4), (2*jp + c)*272 + 16*hb))
        interleave(A, seq, kvl[25:] if hb == 0 else [], 0, len(seq))
    A("v_lshrrev_b32 v9, 4, v0")
    A("v_and_b32 v10, 15, v0")
    A("v_lshlrev_b32 v11, 12, v9")
    A("v_lshl_add_u32 v11, v10, 4, v11")
    A("v_mul_u32_u24 v9, 272, v9")
    A("v_lshl_add_u32 v9, v10, 4, v9")
    A("v_add_u32 v9, s36, v9")
    A("s_lshl_b32 s31, s78, 18")
    A("s_lshl_b32 s39, s39, 1")
    A("s_add_u32 s31, s31, s39")
    A("s_add_u32 s31, s31, %s", hex(WS_UT))
    A("s_waitcnt lgkmcnt(0)")
    for hb in range(2):
        for n in range(8):
            A("ds_read_b128 %s, v9 offset:%d", RR(16 + 32*hb + 4*n, 4), (8*hb + n)*4*272)
        for n in range(8):
            A("s_waitcnt lgkmcnt(%d)", 7 - n)
            A("buffer_store_dwordx4 %s, v11, %s, s31 offen sc1", RR(16 + 32*hb + 4*n, 4), WS)
            A("s_add_u32 s31, s31, 16384")
    stamp(A, 3)
    poll_addr(A, None, None)
    A(POLL)
    A("s_lshl_b32 s37, s32, 7")
    A("s_add_u32 s37, s37, %s", hex(FL_U))
    A("v_lshlrev_b32 v252, 25, v0")
    for x in w_setup(): A(x)
    A("s_waitcnt vmcnt(0)")
    A("v_mov_b32 v%d, v250", VNO)
    A("v_mov_b32 v%d, v251", VNO + 1)
    A("s_nop 0")
    nonce_get(A, "h")
    A("s_barrier")
    stamp(A, 4)
    if P["P1ONLY"]:
        for i in range(5, 10): stamp(A, i)
        stamp_dump(A)
        A("s_endpgm")
    A("s_cmp_lg_u32 s%d, 0", sW)
    A("s_cbranch_scc1 H_nosig")
    A("buffer_store_dwordx2 v[%d:%d], v252, %s, s37 offen sc1", VNO, VNO + 1, WS)
    A.label("H_nosig")
    A("v_bfrev_b32 v252, 1")
    poll_check(A, "hw", False)
    NH0 = P["NH0"]
    emit(A, WL[:NH0])
    A("v_min_u32 v%d, 39, v0", VPA)
    A("v_lshlrev_b32 v%d, 7, v%d", VPA, VPA)
    A("v_add_u32 v%d, %s, v%d", VPA, hex(FL_U), VPA)
    A(POLL)
    A("s_waitcnt vmcnt(0)")
    poll_check(A, "hu", False)
    emit(A, conv_loads(sCH, sCL))
    A("s_add_u32 s36, s%d, 2", sCH)
    A("s_cmp_lt_u32 s32, 24")
    A("s_waitcnt vmcnt(0)")
    stamp(A, 5)
    A("s_cbranch_scc0 L_conv1")
    def rot():
        A("s_mov_b32 s%d, s36", sCH)
        A("s_add_u32 s36, s36, 2")
        A("s_mov_b32 s%d, s%d", sD, sD2)
        A("s_mov_b32 s%d, s79", sD2)
        A("s_mov_b32 s31, s%d", sCL)
        A("s_mov_b32 s%d, s%d", sCL, sCLn)
        A("s_mov_b32 s%d, s31", sCLn)
    gen_conv(A, "0", [], True, False)
    rot()
    if P["ST2"] == 1: stamp(A, 3)
    A("s_waitcnt vmcnt(2)")
    if P["ST2"] == 1: stamp(A, 4)
    gen_conv(A, "1", WL[NH0:nw], True, False)
    rot()
    if P["ST2"] == 2: stamp(A, 3)
    A("s_waitcnt vmcnt(%d)", nw - NH0 + 2)
    if P["ST2"] == 2: stamp(A, 4)
    A("s_branch L_convF")

NAME = "parallel_sum__ssm_conv_h3__swiglu_ffn__prompt"
def build(path, aslist=False):
    ref = open("cdna_kernels/%s.s.ref" % NAME).read().split("\n")
    hdr = [l for l in ref if l.startswith(";") and "@launch" not in l]
    A = Asm()
    for l in hdr: A.raw(l)
    if aslist: A.raw("; @launch kernel=%s grid=(256,1,1) block=(256,1,1) lds=%d" % (KN, LDS_BYTES))
    else: A.raw("; @launch grid=(256,1,1) block=(256,1,1) lds=%d" % LDS_BYTES)
    A.raw('.amdgcn_target "amdgcn-amd-amdhsa--gfx950"')
    A.raw(".text")
    A.raw(".globl %s\n.p2align 8\n.type %s,@function" % (KN, KN))
    gen(A)
    A.raw('.section .rodata,"a"\n.p2align 6')
    A.raw(kd(KN, 512, 256, 102))
    open(path, "w").write(A.text())

if __name__ == "__main__":
    import sys
    build(sys.argv[1], "--list" in sys.argv)
```
